```python
import torch

def _softmax(x, axis=-1):
    return torch.softmax(x, dim=axis)
def _gelu(x):
    return torch.nn.functional.gelu(x, approximate="tanh")
def _silu(x):
    return torch.nn.functional.silu(x)
def _sigmoid(x):
    return torch.sigmoid(x)
def _layernorm(x, axis=-1, eps=1e-5):
    m = x.mean(dim=axis, keepdim=True)
    v = x.var(dim=axis, keepdim=True, unbiased=False)
    return (x - m) / torch.sqrt(v + eps)
def _scatter_add(tgt, idx, src, axis=0):
    return tgt.clone().index_add_(axis, idx, src)
def _segment_sum(src, seg, n):
    out = torch.zeros((n,) + src.shape[1:], dtype=src.dtype)
    return out.index_add_(0, seg, src)
def _pad(x, pw):
    flat = tuple(v for pair in reversed(pw) for v in pair)
    return torch.nn.functional.pad(x, flat)

kernel_name = 'interleave_layers__sliding_local_dilated__dense_activation_mish__prompt'

def setup_inputs():

    _w = (lambda a: (lambda t: t.to(torch.bfloat16) if t.is_floating_point() else t)(torch.as_tensor(a)))
    def _A_setup():
        B, S, D = 1, 2048, 512
        return {
            "x": _w((lambda *s: torch.randn(*s, dtype=torch.bfloat16) * 0.05)(B, S, D)),
            "wqkv": _w((lambda *s: torch.randn(*s, dtype=torch.bfloat16) * 0.05)(D, 3 * D)),
            "wo": _w((lambda *s: torch.randn(*s, dtype=torch.bfloat16) * 0.05)(D, D)),
        }
    _A_in = _A_setup()

    def _B_setup():
        B, S, D, F = 1, 2048, 512, 1792
        return {
            "x": _w((lambda *s: torch.randn(*s, dtype=torch.bfloat16) * 0.05)(B, S, D)),
            "w1": _w((lambda *s: torch.randn(*s, dtype=torch.bfloat16) * 0.8)(D, F) * (D ** -0.5)),
            "b1": _w((lambda *s: torch.randn(*s, dtype=torch.bfloat16) * 0.8)(F)),
            "w2": _w((lambda *s: torch.randn(*s, dtype=torch.bfloat16) * 0.8)(F, D) * (F ** -0.5)),
        }
    _B_in = _B_setup()

    return {
        "A_x": _A_in["x"],
        "A_wqkv": _A_in["wqkv"],
        "A_wo": _A_in["wo"],
        "B_x": _B_in["x"],
        "B_w1": _B_in["w1"],
        "B_b1": _B_in["b1"],
        "B_w2": _B_in["w2"],
    }

def reference(A_x, A_wqkv, A_wo, B_x, B_w1, B_b1, B_w2):
    def _A_ref(x, wqkv, wo):
        B, S, D = x.shape
        H = 32; Dh = D // H
        W, dil = 8, 2
        qkv = (lambda x, *d: x.permute(*d))((x @ wqkv).reshape(B, S, 3, H, Dh), 2, 0, 3, 1, 4)
        q, k, v = qkv[0], qkv[1], qkv[2]
        scale = Dh ** -0.5
        pos = torch.arange(S)
        off = torch.arange(W) * dil
        idx = pos[:, None] - off[None, :]
        mask = idx >= 0
        idx_c = torch.where(mask, idx, 0).reshape(-1)
        kg = k[:, :, idx_c, :].reshape(B, H, S, W, Dh)
        vg = v[:, :, idx_c, :].reshape(B, H, S, W, Dh)
        logits = torch.einsum("bhsd,bhswd->bhsw", q, kg) * scale
        logits = torch.where(mask[None, None, :, :], logits, -1e9)
        attn = _softmax(logits, axis=-1)
        o = torch.einsum("bhsw,bhswd->bhsd", attn, vg)
        return (lambda x, *d: x.permute(*d))(o, 0, 2, 1, 3).reshape(B, S, D) @ wo

    def _B_ref(x, w1, b1, w2):
        h = torch.einsum("bsd,df->bsf", x, w1) + b1
        sp = torch.log1p(torch.exp(-torch.abs(h))) + torch.where(h > 0, h, torch.zeros_like(h))
        act = h * torch.tanh(sp)
        return torch.einsum("bsf,fd->bsd", act, w2)

    x = A_x
    x = x + _A_ref(_layernorm(x, axis=-1), A_wqkv, A_wo)
    x = x + _B_ref(_layernorm(x, axis=-1), B_w1, B_b1, B_w2)
    x = x + _A_ref(_layernorm(x, axis=-1), A_wqkv, A_wo)
    x = x + _B_ref(_layernorm(x, axis=-1), B_w1, B_b1, B_w2)
    return x
```

```python
import re

REG_RE = re.compile(r'(?<![\w.])([vas])(?:(\d+)|\[(\d+):(\d+)\])(?![\w])')

def regs_of(tok):
    out = set()
    for m in REG_RE.finditer(tok):
        f = m.group(1)
        if m.group(2) is not None: out.add((f, int(m.group(2))))
        else:
            for i in range(int(m.group(3)), int(m.group(4)) + 1): out.add((f, i))
    t = tok.strip()
    if t in ('vcc',): out |= {('s', 106), ('s', 107)}
    if t == 'exec': out |= {('s', 126), ('s', 127)}
    if t == 'm0': out.add(('s', 124))
    return out

TRANS = ('v_exp_f32', 'v_log_f32', 'v_rcp_f32', 'v_rsq_f32', 'v_sqrt_f32', 'v_sin_f32', 'v_cos_f32')

class Ins:
    __slots__ = ('text', 'op', 'dst', 'src', 'kind', 'tag', 'srcC', 'isdpp')
    def __init__(self, text, tag=None):
        self.text = text; self.tag = tag
        t = text.split(';')[0].strip()
        parts = t.split(None, 1)
        self.op = parts[0]
        ops = []
        if len(parts) > 1:
            depth = 0; cur = ''
            for ch in parts[1]:
                if ch == '[': depth += 1
                if ch == ']': depth -= 1
                if ch == ',' and depth == 0: ops.append(cur.strip()); cur = ''
                else: cur += ch
            ops.append(cur.strip())
        mods = ''
        if ops:
            last = ops[-1].split(None, 1)
            ops[-1] = last[0]
            mods = last[1] if len(last) > 1 else ''
        op = self.op
        R = [regs_of(o) for o in ops]
        U = lambda L: set().union(*L) if L else set()
        self.dst = set(); self.src = set(); self.srcC = set(); self.isdpp = ('dpp' in op) or ('row_' in mods) or ('quad_perm' in mods)
        if op.startswith('v_mfma'):
            self.kind = 'mfma'; self.dst = R[0]; self.src = U(R[1:3]); self.srcC = R[3]
        elif op.startswith('v_cmp'):
            self.kind = 'valu'; self.dst = R[0]; self.src = U(R[1:])
        elif op in ('v_readfirstlane_b32', 'v_readlane_b32'):
            self.kind = 'valu'; self.dst = R[0]; self.src = U(R[1:])
        elif op.startswith('v_permlane'):
            self.kind = 'valu'; self.dst = U(R[:2]); self.src = U(R[:2])
        elif op.startswith('v_fmac') or op.startswith('v_dot2c') or op == 'v_writelane_b32':
            self.kind = 'valu'; self.dst = R[0]; self.src = U(R)
        elif op.startswith('v_'):
            self.kind = 'valu'; self.dst = R[0]; self.src = U(R[1:])
        elif op.startswith('buffer_load') or op.startswith('global_load'):
            if ' lds' in (' ' + mods) or op.startswith('global_load_lds'):
                self.kind = 'dma'; self.src = U(R) | {('s', 124)}
            else:
                self.kind = 'vload'; self.dst = R[0]; self.src = U(R[1:])
        elif op.startswith('buffer_store') or op.startswith('global_store'):
            self.kind = 'vstore'; self.src = U(R)
        elif op.startswith('buffer_atomic'):
            self.kind = 'vload' if 'sc0' in mods else 'vstore'
            if self.kind == 'vload': self.dst = R[0]
            self.src = U(R)
        elif op.startswith('ds_read') or op.startswith('ds_bpermute') or op.startswith('ds_swizzle'):
            self.kind = 'dsread'; self.dst = R[0]; self.src = U(R[1:])
        elif op.startswith('ds_write'):
            self.kind = 'dswrite'; self.src = U(R)
        elif op in ('s_waitcnt', 's_barrier', 's_nop', 's_branch', 's_endpgm', 's_setprio', 's_sleep') or op.startswith('s_cbranch'):
            self.kind = 'sctl'
        elif op.startswith('s_cmp') or op.startswith('s_bitcmp'):
            self.kind = 'salu'; self.src = U(R)
        elif op.startswith('s_load') or op.startswith('s_memtime') or op.startswith('s_memrealtime'):
            self.kind = 'smem'; self.dst = R[0]; self.src = U(R[1:])
        elif op.startswith('s_'):
            self.kind = 'salu'; self.dst = R[0]; self.src = U(R[1:])
            if op in ('s_addk_i32', 's_mulk_i32'): self.src |= R[0]
        else:
            raise ValueError('unknown instruction: ' + text)

class Asm:
    def __init__(self):
        self.out = []
        self.vmq = []
        self.lgq = []
        self.hist = []
        self.alts = []
        self.n_nops = 0; self.n_waits = 0; self.n_ins = 0
        self.smem_pending = False; self.nvm = 0; self.nlg = 0; self.maxvm = 0
    def raw(self, text): self.out.append(text)
    def comment(self, text): self.out.append('; ' + text)
    def label(self, name):
        self.out.append(name + ':')
    def _wait(self, vm=None, lg=None):
        parts = []
        if vm is not None:
            n = min(vm, 63); parts.append(f'vmcnt({n})'); self.vmq = self.vmq[len(self.vmq) - n:] if n < len(self.vmq) and n > 0 else ([] if n == 0 else self.vmq)
        if lg is not None:
            n = min(lg, 15); parts.append(f'lgkmcnt({n})'); self.lgq = self.lgq[len(self.lgq) - n:] if n < len(self.lgq) and n > 0 else ([] if n == 0 else self.lgq)
            if n == 0: self.smem_pending = False
        self._put(Ins('s_waitcnt ' + ' '.join(parts))); self.n_waits += 1
    def wait_vm(self, n=0):
        if len(self.vmq) > n: self._wait(vm=n)
    def wait_lg(self, n=0):
        if len(self.lgq) > n or (n == 0 and self.smem_pending): self._wait(lg=n)
    def wait_all(self, force=False):
        if force or self.vmq or self.lgq or self.smem_pending: self._wait(vm=0, lg=0)
    def wait_vm_tag(self, tag):
        idx = max((i for i, (d, t) in enumerate(self.vmq) if t == tag), default=None)
        if idx is not None: self._wait(vm=len(self.vmq) - 1 - idx)
    def wait_lg_tag(self, tag):
        idx = max((i for i, (d, t) in enumerate(self.lgq) if t == tag), default=None)
        if idx is not None: self._wait(lg=len(self.lgq) - 1 - idx)
    def wait_regs(self, regs):
        rs = regs_of(regs) if isinstance(regs, str) else regs
        self._need(rs)
    def _need(self, rs):
        vi = max((i for i, (d, t) in enumerate(self.vmq) if d & rs), default=None)
        li = max((i for i, (d, t) in enumerate(self.lgq) if d & rs), default=None)
        if vi is not None or li is not None:
            self._wait(vm=None if vi is None else len(self.vmq) - 1 - vi, lg=None if li is None else len(self.lgq) - 1 - li)
    def forget(self):
        self.vmq = []; self.lgq = []; self.smem_pending = False
    def _states_since(self, pred):
        best = None
        for hist in [self.hist] + self.alts:
            n = 0
            for h in reversed(hist):
                if isinstance(h, int): n += h; continue
                if pred(h):
                    best = n if best is None else min(best, n); break
                n += 1
                if n > 12: break
        return best
    def snapshot(self):
        return (list(self.vmq), list(self.lgq), list(self.hist), self.nvm, self.nlg)
    def cond_skip(self, branch_text):
        self(branch_text)
        return self.snapshot()
    def cond_join(self, label, snap):
        if len(self.vmq) > 0 and self.nvm != snap[3]: self._wait(vm=0)
        if len(self.lgq) > 0 and self.nlg != snap[4]: self._wait(lg=0)
        self.out.append(label + ':')
        self.vmq, self.lgq = list(snap[0]), list(snap[1])
        self.alts.append(list(snap[2]))
    def _hazard_need(self, I):
        need = 0
        def chk(pred, req):
            nonlocal need
            s = self._states_since(pred)
            if s is not None and s < req: need = max(need, req - s)
        isv = lambda r: r[0] in 'va'
        vsrc = {r for r in I.src if isv(r)}; vdst = {r for r in I.dst if isv(r)}
        ssrc = {r for r in I.src if r[0] == 's'}
        if I.kind == 'mfma':
            allsrc = vsrc | {r for r in I.srcC if isv(r)}
            chk(lambda h: h.kind == 'valu' and h.dst & allsrc, 2)
            chk(lambda h: h.kind == 'mfma' and h.dst & vsrc, 8)
            chk(lambda h: h.kind == 'mfma' and (h.dst & I.srcC) and h.dst != I.srcC, 6)
            chk(lambda h: h.kind == 'mfma' and (h.dst & I.dst) and h.dst != I.srcC, 8)
        if I.kind == 'valu':
            chk(lambda h: h.kind == 'mfma' and h.dst & (vsrc | vdst), 8)
            chk(lambda h: h.kind == 'mfma' and h.srcC & vdst, 3)
            chk(lambda h: h.kind == 'valu' and h.op.startswith(TRANS) and h.dst & vsrc and not I.op.startswith(TRANS), 1)
            chk(lambda h: h.kind == 'valu' and h.op.startswith(TRANS) and h.dst & vsrc, 1)
            if I.op.startswith('v_permlane') or I.isdpp: chk(lambda h: h.kind == 'valu' and h.dst & vsrc, 2)
            if I.op in ('v_readfirstlane_b32', 'v_readlane_b32'): chk(lambda h: h.kind == 'valu' and h.dst & vsrc, 1)
            chk(lambda h: h.kind == 'valu' and {r for r in h.dst if r[0] == 's'} & ssrc, 2)
            if I.op in ('v_readlane_b32', 'v_writelane_b32'): chk(lambda h: h.kind == 'valu' and {r for r in h.dst if r[0] == 's'} & ssrc, 4)
            chk(lambda h: h.kind == 'vstore' and ('x4' in h.op or 'x3' in h.op) and h.src & vdst, 2)
            chk(lambda h: h.kind == 'dswrite' and ('b128' in h.op) and h.src & vdst, 2)
        if I.kind in ('vload', 'vstore', 'dma', 'dsread', 'dswrite'):
            chk(lambda h: h.kind == 'mfma' and h.dst & (vsrc | vdst), 8)
            chk(lambda h: h.kind == 'mfma' and h.srcC & vdst, 3)
            chk(lambda h: h.kind == 'valu' and {r for r in h.dst if r[0] == 's'} & ssrc, 5)
            chk(lambda h: h.kind == 'valu' and h.op.startswith(TRANS) and h.dst & vsrc, 1)
            if vdst: chk(lambda h: h.kind == 'vstore' and ('x4' in h.op or 'x3' in h.op) and h.src & vdst, 1)
        if I.kind == 'dma':
            chk(lambda h: h.kind == 'salu' and ('s', 124) in h.dst, 1)
        if I.kind in ('salu', 'smem'):
            chk(lambda h: h.kind == 'valu' and {r for r in h.dst if r[0] == 's'} & ssrc, 4)
        if I.kind == 'sctl' and I.op.startswith('s_cbranch_vcc'):
            chk(lambda h: h.kind == 'valu' and (('s', 106) in h.dst), 1)
        return need
    def _put(self, I):
        need = self._hazard_need(I)
        def push(x):
            self.hist.append(x)
            for h in self.alts: h.append(x)
        if need > 0:
            self.out.append(f's_nop {need - 1}'); push(need); self.n_nops += 1
        self.out.append(I.text)
        if I.op == 's_nop': push(int(I.text.split()[1]) + 1)
        else: push(I)
        if len(self.hist) > 40: self.hist = self.hist[-30:]
        self.alts = [h for h in self.alts if len(h) < 60]
        self.n_ins += 1
    def __call__(self, text, tag=None):
        for line in text.split('\n'):
            line = line.strip()
            if not line: continue
            if line.startswith(';'): self.out.append(line); continue
            if line.endswith(':'): self.label(line[:-1]); continue
            I = Ins(line, tag)
            if I.kind == 'sctl' and I.op == 's_waitcnt':
                m = re.search(r'vmcnt\((\d+)\)', line); m2 = re.search(r'lgkmcnt\((\d+)\)', line)
                self._wait(vm=int(m.group(1)) if m else None, lg=int(m2.group(1)) if m2 else None); continue
            touched = {r for r in (I.src | I.dst | I.srcC)}
            self._need(touched)
            if self.smem_pending and I.kind != 'smem':
                pass
            self._put(I)
            if I.kind in ('vload', 'vstore', 'dma'):
                self.vmq.append((set(I.dst), tag)); self.nvm += 1; self.maxvm = max(self.maxvm, len(self.vmq))
            elif I.kind in ('dsread', 'dswrite'):
                self.lgq.append((set(I.dst), tag)); self.nlg += 1
            elif I.kind == 'smem':
                self.smem_pending = True
    def text(self): return '\n'.join(self.out) + '\n'
```

```python
import sys, os, math, struct
sys.path.insert(0, os.path.dirname(os.path.abspath(__file__)))
from asmlib import Asm

NAME = 'interleave_layers__sliding_local_dilated__dense_activation_mish__prompt'
KNAME = NAME + '_kernel'

def f2u(x): return struct.unpack('<I', struct.pack('<f', x))[0]
LOG2E = 1.4426950408889634
LN2 = 0.6931471805599453

XSTRIDE = 0x400000
FLAGS = 0x0; HFLAG = 0x400
X0 = 0x10000; H0 = 0x50000; ST0 = 0x54000; HS0 = 0x58000
O1 = 0x60000; X1 = 0xA0000; ST1 = 0xE0000; ACT1 = 0x100000
DELTA = 0x1D0000
TS = 0x3C0000
LDS_BYTES = 163840
B1 = 0; B2 = 98304; B3 = 0
B4HI = 114688
B4LO = 0
KVX = 57344
HPX = KVX + 6144
STS = HPX + 12288
CSX = 57344

S_WS, S_WQ, S_WO, S_W1, S_W2, S_MISC, S_RM, S_DBG = 8, 12, 16, 20, 24, 28, 32, 36
sXCC, sSLOT, sWAVE, sGRP, sC, sRB, sCB, sIT = 40, 41, 42, 43, 44, 45, 46, 47
sT0, sT1, sT2, sT3, sT4, sT5 = 48, 49, 50, 51, 52, 53
sPH = 54
sB1S, sB1M = 55, 56
sB2S, sB2M = 57, 58
sB3S, sB3M = 59, 60
sB4S = 61
sB4H, sB4L = 62, 63
KA = 64
sXO = 84; sFLG = 85; sSPIN = 86; sTMPA = 87; sTMPB = 88; sONES = 89; sC1 = 90; sC2 = 91
sTSB = 92; sFIRST = 93; sEPS = 94; sTA = 96
def srd(b): return f's[{b}:{b+3}]'

class VA:
    def __init__(self): self.n = 0
    def get(self, k=1, align=1):
        self.n = (self.n + align - 1) // align * align
        r = self.n; self.n += k; return r
va = VA()
vLANE = va.get(); vL16 = va.get(); vD1 = va.get(); vD2 = va.get()
vD3 = va.get(7)
vR1 = va.get(4)
vR2 = va.get(4)
vR3 = va.get(2)
vR4L = va.get(4); vR4H = va.get(4)
vSTO = va.get()
vOUT = va.get()
vPOLL = va.get()
vZERO = va.get()
vCSQ = va.get(8, 2); vCSK = va.get(8, 2); vCSV = va.get(2, 2)
vMC = va.get(4, 2); vMP = va.get(4, 2); vMF = va.get(4, 2)
vCS1 = va.get(28, 2); vBC1 = va.get(28, 2)
vRP = va.get(8, 4)
assert va.n <= 128, va.n
ACC = 128
WF = 192
TMP = 224
def v(n, k=1): return f'v{n}' if k == 1 else f'v[{n}:{n+k-1}]'
def a_(n, k=1): return f'a{n}' if k == 1 else f'a[{n}:{n+k-1}]'

class Gen:
    def __init__(self, stop=None, ts=False):
        self.a = Asm(); self.stop = stop; self.ts = ts; self.nts = 0; self.uid = 0
    def lab(self, p): self.uid += 1; return f'L_{p}_{self.uid}'
    def stamp(self, name):
        if not self.ts: return
        a = self.a
        a.wait_lg(0)
        a(f's_memtime s[{sTA}:{sTA+1}]')
        a('s_waitcnt lgkmcnt(0)')
        a.smem_pending = False
        a(f'v_mov_b32 v{TMP+31}, s{sTA}')
        a(f's_add_u32 s{sTMPB}, s{sTSB}, {4*self.nts}')
        a('s_mov_b64 exec, 1')
        a(f'buffer_store_dword v{TMP+31}, v{vZERO}, {srd(S_WS)}, s{sTMPB} offen')
        a('s_mov_b64 exec, -1')
        self.names = getattr(self, 'names', []); self.names.append(name)
        self.nts += 1
    def barrier(self):
        self.a.wait_lg(0); self.a('s_barrier')
    def poll(self, target_sgpr, cachemod='sc1', srdb=S_WS):
        a = self.a; L = self.lab('poll'); Lo = self.lab('pollok')
        a.wait_all()
        a(f's_mov_b32 s{sSPIN}, 0')
        a.label(L)
        a(f'buffer_load_dword v{TMP}, v{vPOLL}, {srd(srdb)}, 0 offen {cachemod}')
        a('s_waitcnt vmcnt(0)')
        a(f'v_cmp_gt_u32 vcc, s{target_sgpr}, v{TMP}')
        a(f's_cbranch_vccz {Lo}')
        a(f's_add_u32 s{sSPIN}, s{sSPIN}, 1')
        a(f's_cmp_lt_u32 s{sSPIN}, 0x40000')
        a(f's_cbranch_scc1 {L}')
        a(f'v_mov_b32 v{TMP}, 0xdead')
        a(f's_movk_i32 s{sSPIN}, 252')
        a(f'buffer_store_dword v{TMP}, v{vZERO}, {srd(S_DBG)}, s{sSPIN} offen sc1')
        a('s_waitcnt vmcnt(0)')
        a.label(Lo)
        a.forget()
    def set_flag(self, val_sgpr):
        a = self.a
        a.wait_vm(0)
        a(f'v_mov_b32 v{TMP}, s{val_sgpr}')
        a('s_mov_b64 exec, 1')
        a(f'buffer_store_dword v{TMP}, v{vZERO}, {srd(S_WS)}, s{sFLG} offen')
        a('s_mov_b64 exec, -1')
    def dma(self, voff, srdb, soff_base, soff_imm, m0_base, m0_imm, tag):
        return [f's_add_u32 m0, s{m0_base}, {m0_imm}' if m0_base is not None else f's_mov_b32 m0, {m0_imm}',
                f's_add_u32 s{sTMPA}, s{soff_base}, {soff_imm}',
                (f'buffer_load_dwordx4 v{voff}, {srd(srdb)}, s{sTMPA} offen lds', tag)]
    def emit(self, x):
        if isinstance(x, tuple): self.a(x[0], tag=x[1])
        else: self.a(x)
    def emit_all(self, L):
        for x in L: self.emit(x)
    def dma_B1(self):
        L = []
        for ds in range(4):
            for mat in range(3):
                for h in range(2):
                    L += self.dma(vD1, S_WQ, sB1S, (32*ds + 16*h)*3072 + mat*1024, sB1M, ds*6144 + mat*2048 + h*1024, 'B1')
        return L
    def dma_B2(self):
        L = []
        for ds in range(4):
            for i in range(4):
                L += self.dma(vD2, S_WO, sB2S, (32*ds + 8*i)*1024, sB2M, ds*4096 + i*1024, 'B2')
        return L
    def dma_B3(self, part):
        L = []
        for ds in range(2):
            s = 8*part + ds
            for j in range(7):
                L += self.dma(vD3 + j, S_W1, sB3S, s*32*3584, sB3M, s*7168 + j*1024, 'B3')
        return L
    @staticmethod
    def w2_rowbase(n, h):
        P, i = divmod(n, 7)
        if i < 3: return 224*P + 32*i + 16*h
        if i < 6: return 224*P + 112 + 32*(i-3) + 16*h
        return 224*P + (96 if h == 0 else 208)
    def b4_slot(self, n):
        s = n if n < 9 else n - 9
        return ('H', s*4096) if s < 3 else ('L', (s-3)*4096)
    def dma_B4(self, n):
        L = []; part, off = self.b4_slot(n)
        for h in range(2):
            for i in range(2):
                L += self.dma(vD2, S_W2, sB4S, (self.w2_rowbase(n, h) + 8*i)*1024, sB4H if part == 'H' else sB4L, off + h*2048 + i*1024, f'B4_{n}')
        return L
    def reduce_pair_sum(self, x, y, u):
        a = self.a
        a(f'v_permlane32_swap_b32 v{x}, v{y}')
        a(f'v_add_f32 v{x}, v{x}, v{y}')
        a(f'v_mov_b32 v{u}, v{x}')
        a(f'v_permlane16_swap_b32 v{u}, v{x}')
        a(f'v_add_f32 v{x}, v{x}, v{u}')
        a(f'v_mov_b32 v{y}, v{x}')
        a(f'v_permlane32_swap_b32 v{x}, v{y}')
    def stats_finalize(self, q, rstd, mr):
        a = self.a
        a(f'v_add_f32 v{q}, v{q}, v{q+2}')
        a(f'v_add_f32 v{q+1}, v{q+1}, v{q+3}')
        self.reduce_pair_sum(q, q+1, q+2)
        a(f'v_mul_f32 v{q}, {f2u(1/512.):#x}, v{q}')
        a(f'v_mul_f32 v{q+1}, {f2u(1/512.):#x}, v{q+1}')
        a(f'v_fma_f32 v{q+1}, -v{q}, v{q}, v{q+1}')
        a(f'v_max_f32 v{q+1}, 0, v{q+1}')
        a(f'v_add_f32 v{q+1}, s{sEPS}, v{q+1}')
        a(f'v_rsq_f32 v{rstd}, v{q+1}')
        a(f'v_mul_f32 v{mr}, v{q}, v{rstd}')
    def prologue(self):
        a = self.a
        a(f's_cmp_ge_u32 s2, 256')
        a(f's_cbranch_scc1 L_end')
        a(f's_load_dwordx16 s[{KA}:{KA+15}], s[0:1], 0')
        a(f's_load_dwordx4 s[{KA+16}:{KA+19}], s[0:1], 64')
        a(f's_getreg_b32 s{sXCC}, hwreg(HW_REG_XCC_ID, 0, 4)')
        a(f'v_lshrrev_b32 v1, 6, v0')
        a(f'v_and_b32 v{vLANE}, 63, v0')
        a(f'v_readfirstlane_b32 s{sWAVE}, v1')
        a(f's_and_b32 s{sXCC}, s{sXCC}, 7')
        a(f'v_lshlrev_b32 v{vL16}, 4, v{vLANE}')
        a(f'v_mov_b32 v{vZERO}, 0')
        a('s_waitcnt lgkmcnt(0)')
        P = lambda i: KA + 2*i
        def mk(b, p, n):
            a(f's_mov_b32 s{b}, s{P(p)}'); a(f's_and_b32 s{b+1}, s{P(p)+1}, 0xffff'); a(f's_mov_b32 s{b+2}, {n:#x}'); a(f's_mov_b32 s{b+3}, 0x20000')
        mk(S_DBG, 8, 256)
        Ls = self.lab('noatom')
        a(f's_cmp_lg_u32 s{sWAVE}, 0')
        snap = a.cond_skip(f's_cbranch_scc1 {Ls}')
        a(f'v_mov_b32 v{TMP}, 1')
        a(f's_lshl_b32 s{sT0}, s{sXCC}, 2')
        a('s_mov_b64 exec, 1')
        a(f'buffer_atomic_add v{TMP}, v{vZERO}, {srd(S_DBG)}, s{sT0} offen sc0')
        a('s_waitcnt vmcnt(0)')
        a(f'ds_write_b32 v{vZERO}, v{TMP}')
        a('s_mov_b64 exec, -1')
        a('s_waitcnt lgkmcnt(0)')
        a.cond_join(Ls, snap)
        mk(S_WQ, 1, 512*1536*2); mk(S_WO, 2, 512*512*2); mk(S_W1, 4, 512*1792*2); mk(S_W2, 6, 1792*512*2)
        mk(S_MISC, 0, 2048*512*2)
        a(f's_mul_i32 s{sT0}, s{sXCC}, {XSTRIDE:#x}')
        a(f's_add_u32 s{S_WS}, s{P(9)}, s{sT0}'); a(f's_addc_u32 s{S_WS+1}, s{P(9)+1}, 0'); a(f's_and_b32 s{S_WS+1}, s{S_WS+1}, 0xffff')
        a(f's_mov_b32 s{S_WS+2}, {XSTRIDE:#x}'); a(f's_mov_b32 s{S_WS+3}, 0x20000')
        a(f's_add_u32 s{sT0}, s{sT0}, {XSTRIDE:#x}')
        a(f's_add_u32 s{S_RM}, s{P(9)}, s{sT0}'); a(f's_addc_u32 s{S_RM+1}, s{P(9)+1}, 0'); a(f's_and_b32 s{S_RM+1}, s{S_RM+1}, 0xffff')
        a(f's_mov_b32 s{S_RM+2}, {XSTRIDE:#x}'); a(f's_mov_b32 s{S_RM+3}, 0x20000')
        a('s_barrier')
        a(f'ds_read_b32 v{TMP}, v{vZERO}')
        a(f'v_readfirstlane_b32 s{sSLOT}, v{TMP}')
        a('s_barrier')
        a(f's_and_b32 s{sSLOT}, s{sSLOT}, 31')
        a(f's_lshr_b32 s{sGRP}, s{sSLOT}, 4'); a(f's_and_b32 s{sC}, s{sSLOT}, 15')
        a(f's_lshr_b32 s{sT0}, s{sC}, 3'); a(f's_lshl_b32 s{sRB}, s{sGRP}, 1'); a(f's_add_u32 s{sRB}, s{sRB}, s{sT0}')
        a(f's_and_b32 s{sCB}, s{sC}, 7')
        a(f's_mov_b32 s{sIT}, 0'); a(f's_mov_b32 s{sPH}, 0')
        a(f's_lshl_b32 s{sFLG}, s{sSLOT}, 4'); a(f's_lshl_b32 s{sT0}, s{sWAVE}, 2'); a(f's_add_u32 s{sFLG}, s{sFLG}, s{sT0}')
        a(f's_mov_b32 s{sONES}, 0x3f803f80'); a(f's_mov_b32 s{sEPS}, {f2u(1e-5):#x}')
        if self.ts:
            a(f's_lshl_b32 s{sTSB}, s{sFLG}, 6'); a(f's_add_u32 s{sTSB}, s{sTSB}, {TS:#x}')
        Ln = self.lab('nolead')
        a(f's_or_b32 s{sT0}, s{sSLOT}, s{sWAVE}'); a(f's_cmp_lg_u32 s{sT0}, 0'); snap = a.cond_skip(f's_cbranch_scc1 {Ln}')
        a(f'v_lshlrev_b32 v{TMP+1}, 2, v{vLANE}')
        a(f'buffer_store_dword v{vZERO}, v{TMP+1}, {srd(S_WS)}, 0 offen')
        a(f'buffer_store_dword v{vZERO}, v{TMP+1}, {srd(S_WS)}, 0 offen offset:256')
        a(f's_mov_b64 exec, 0xffff')
        a(f'buffer_store_dword v{vZERO}, v{TMP+1}, {srd(S_WS)}, 0 offen offset:{HFLAG} sc1')
        a('s_mov_b64 exec, 1')
        a('s_waitcnt vmcnt(0)')
        a(f'v_mov_b32 v{TMP}, 1')
        a(f's_lshl_b32 s{sT0}, s{sXCC}, 2')
        a(f'buffer_store_dword v{TMP}, v{vZERO}, {srd(S_DBG)}, s{sT0} offen offset:128')
        a(f'buffer_store_dword v{TMP}, v{vZERO}, {srd(S_DBG)}, s{sT0} offen offset:64 sc1')
        a('s_mov_b64 exec, -1')
        a('s_waitcnt vmcnt(0)')
        a.cond_join(Ln, snap)
        self.stamp('role')
        self.lane_consts()
    def lane_consts(self):
        a = self.a
        T = TMP
        p, g, pr, pc = T+1, T+2, T+3, T+4
        a(f'v_and_b32 v{p}, 15, v{vLANE}'); a(f'v_lshrrev_b32 v{g}, 4, v{vLANE}')
        a(f'v_lshrrev_b32 v{pr}, 2, v{p}'); a(f'v_and_b32 v{pc}, 3, v{p}')
        r = T+5
        a(f'v_lshlrev_b32 v{r}, 2, v{g}'); a(f'v_add_u32 v{r}, v{r}, v{pr}')
        c8 = T+6
        a(f'v_lshlrev_b32 v{c8}, 3, v{pc}')
        t0, t1 = T+7, T+8
        a(f'v_lshrrev_b32 v{t0}, 2, v{vLANE}'); a(f'v_mul_u32_u24 v{t0}, 3072, v{t0}')
        a(f'v_and_b32 v{t1}, 1, v{g}'); a(f'v_lshlrev_b32 v{t1}, 1, v{t1}'); a(f'v_xor_b32 v{t1}, v{t1}, v{pc}')
        a(f'v_lshlrev_b32 v{t1}, 4, v{t1}'); a(f'v_add_u32 v{vD1}, v{t0}, v{t1}')
        a(f'v_lshrrev_b32 v{t0}, 3, v{vLANE}'); a(f'v_lshlrev_b32 v{t0}, 10, v{t0}')
        a(f'v_and_b32 v{t1}, 7, v{vLANE}'); a(f'v_lshlrev_b32 v{T+9}, 1, v{g}'); a(f'v_xor_b32 v{t1}, v{t1}, v{T+9}')
        a(f'v_lshlrev_b32 v{t1}, 4, v{t1}'); a(f'v_add_u32 v{vD2}, v{t0}, v{t1}')
        a(f's_mov_b32 s{sT0}, 4682')
        for j in range(7):
            a(f'v_add_u32 v{t0}, {64*j}, v{vLANE}')
            a(f'v_mul_u32_u24 v{t1}, s{sT0}, v{t0}'); a(f'v_lshrrev_b32 v{t1}, 16, v{t1}')
            a(f'v_mul_u32_u24 v{T+9}, 14, v{t1}'); a(f'v_sub_u32 v{t0}, v{t0}, v{T+9}')
            a(f'v_mul_u32_u24 v{t1}, 3584, v{t1}'); a(f'v_lshlrev_b32 v{t0}, 4, v{t0}')
            a(f'v_add_u32 v{vD3+j}, v{t0}, v{t1}')
        a(f'v_and_b32 v{t1}, 1, v{g}'); a(f'v_lshlrev_b32 v{t1}, 5, v{t1}')
        a(f'v_lshlrev_b32 v{t0}, 6, v{r}'); a(f'v_add_u32 v{t0}, v{t0}, v{c8}')
        a(f'v_add_u32 v{vR1}, v{t0}, v{t1}'); a(f'v_xor_b32 v{vR1+1}, 32, v{vR1}')
        a(f'v_add_u32 v{vR1+2}, {8*6144}, v{vR1}'); a(f'v_add_u32 v{vR1+3}, {8*6144}, v{vR1+1}')
        a(f'v_lshrrev_b32 v{t1}, 3, v{p}'); a(f'v_lshlrev_b32 v{T+9}, 1, v{g}'); a(f'v_add_u32 v{t1}, v{t1}, v{T+9}')
        a(f'v_and_b32 v{t1}, 3, v{t1}'); a(f'v_lshlrev_b32 v{t1}, 5, v{t1}')
        a(f'v_lshlrev_b32 v{t0}, 7, v{r}'); a(f'v_add_u32 v{t0}, v{t0}, v{c8}')
        a(f's_mul_i32 s{sB4L}, s{sWAVE}, 24576'); a(f's_mul_i32 s{sB4H}, s{sWAVE}, 12288'); a(f's_add_u32 s{sB4H}, s{sB4H}, {B4HI}')
        for ct in range(4):
            a(f'v_xor_b32 v{T+9}, {ct*32}, v{t1}'); a(f'v_add_u32 v{T+9}, v{T+9}, v{t0}')
            a(f'v_add_u32 v{vR2+ct}, {B2}, v{T+9}')
            a(f'v_add_u32 v{vR4L+ct}, s{sB4L}, v{T+9}'); a(f'v_add_u32 v{vR4H+ct}, s{sB4H}, v{T+9}')
        a(f'v_mul_u32_u24 v{t0}, 224, v{r}'); a(f'v_add_u32 v{vR3}, v{t0}, v{c8}'); a(f'v_add_u32 v{vR3+1}, {9*7168}, v{vR3}')
        a(f's_lshr_b32 s{sT0}, s{sCB}, 1'); a(f's_lshl_b32 s{sT0}, s{sT0}, 8'); a(f's_and_b32 s{sT1}, s{sCB}, 1'); a(f's_lshl_b32 s{sT1}, s{sT1}, 3')
        a(f's_add_u32 s{sT0}, s{sT0}, s{sT1}')
        a(f'v_lshlrev_b32 v{t0}, 4, v{p}'); a(f'v_lshrrev_b32 v{t1}, 5, v{vLANE}'); a(f'v_lshlrev_b32 v{t1}, 2, v{t1}')
        a(f'v_add_u32 v{t0}, v{t0}, v{t1}'); a(f'v_add_u32 v{vSTO}, s{sT0}, v{t0}')
        a(f'v_and_b32 v{t1}, 1, v{g}'); a(f'v_mul_u32_u24 v{t1}, 24, v{t1}')
        a(f'v_lshlrev_b32 v{t0}, 3, v{g}'); a(f'v_add_u32 v{t0}, v{t0}, v{t1}')
        a(f'v_lshlrev_b32 v{t1}, 10, v{p}'); a(f'v_add_u32 v{t0}, v{t0}, v{t1}')
        a(f's_lshl_b32 s{sT0}, s{sCB}, 7'); a(f'v_add_u32 v{vOUT}, s{sT0}, v{t0}')
        NEG = f2u(-1e30)
        a(f's_mov_b32 s{sT2}, {NEG:#x}')
        a(f'v_mov_b32 v{T+10}, s{sT2}')
        a(f's_or_b32 s{sT0}, s{sXCC}, s{sGRP}'); a(f's_or_b32 s{sFIRST}, s{sT0}, s{sWAVE}')
        for r_ in range(4):
            a(f'v_lshlrev_b32 v{t0}, 2, v{g}'); a(f'v_add_u32 v{t0}, {r_}, v{t0}')
            a(f'v_sub_u32 v{t1}, v{p}, v{t0}')
            a(f'v_and_b32 v{T+9}, 1, v{t1}')
            a(f'v_cmp_eq_u32 s[{sT4}:{sT4+1}], 0, v{T+9}')
            a(f'v_cmp_le_i32 vcc, 0, v{t1}')
            a(f's_and_b64 vcc, vcc, s[{sT4}:{sT4+1}]')
            a(f'v_cndmask_b32 v{vMC+r_}, v{T+10}, v{vZERO}, vcc')
            a(f'v_cmp_ge_i32 vcc, -2, v{t1}')
            a(f's_and_b64 vcc, vcc, s[{sT4}:{sT4+1}]')
            a(f'v_cndmask_b32 v{vMP+r_}, v{T+10}, v{vZERO}, vcc')
            a(f's_cmp_eq_u32 s{sFIRST}, 0')
            a(f's_cselect_b64 vcc, 0, vcc')
            a(f'v_cndmask_b32 v{vMF+r_}, v{T+10}, v{vZERO}, vcc')
        a(f's_mul_i32 s{sB1S}, s{sWAVE}, {4*32*3072}'); a(f's_lshl_b32 s{sT0}, s{sC}, 6'); a(f's_add_u32 s{sB1S}, s{sB1S}, s{sT0}')
        a(f's_mul_i32 s{sB1M}, s{sWAVE}, {4*6144}')
        a(f's_mul_i32 s{sB2S}, s{sWAVE}, {4*32*1024}'); a(f's_lshl_b32 s{sT0}, s{sCB}, 7'); a(f's_add_u32 s{sB2S}, s{sB2S}, s{sT0}')
        a(f's_mul_i32 s{sB2M}, s{sWAVE}, {4*4096}'); a(f's_add_u32 s{sB2M}, s{sB2M}, {B2}')
        a(f's_mul_i32 s{sB3S}, s{sWAVE}, {2*32*3584}'); a(f's_mul_i32 s{sT0}, s{sC}, 224'); a(f's_add_u32 s{sB3S}, s{sB3S}, s{sT0}')
        a(f's_mul_i32 s{sB3M}, s{sWAVE}, {2*7168}')
        a(f's_mul_i32 s{sB4S}, s{sWAVE}, {448*1024}'); a(f's_lshl_b32 s{sT0}, s{sCB}, 7'); a(f's_add_u32 s{sB4S}, s{sB4S}, s{sT0}')
    def phase0(self):
        a = self.a; T = TMP
        R = [T+4, T+8, T+12]
        a(f's_lshl_b32 s{sT0}, s{sXCC}, 8'); a(f's_lshl_b32 s{sT1}, s{sSLOT}, 3'); a(f's_add_u32 s{sT0}, s{sT0}, s{sT1}')
        a(f's_lshl_b32 s{sT1}, s{sWAVE}, 1'); a(f's_add_u32 s{sT0}, s{sT0}, s{sT1}'); a(f's_lshl_b32 s{sT0}, s{sT0}, 10')
        a(f'buffer_load_dwordx4 {v(R[0],4)}, v{vL16}, {srd(S_MISC)}, s{sT0} offen')
        a(f'buffer_load_dwordx4 {v(R[1],4)}, v{vL16}, {srd(S_MISC)}, s{sT0} offen offset:1024')
        a(f's_lshl_b32 s{sT1}, s{sXCC}, 8'); a(f's_lshl_b32 s{sT2}, s{sSLOT}, 2'); a(f's_add_u32 s{sT1}, s{sT1}, s{sT2}'); a(f's_add_u32 s{sT1}, s{sT1}, s{sWAVE}')
        a(f's_sub_u32 s{sT1}, s{sT1}, 16'); a(f's_lshl_b32 s{sT1}, s{sT1}, 10')
        a(f's_cmp_eq_u32 s{sXCC}, 0'); a(f's_cselect_b32 s{sT1}, 0x7ff00000, s{sT1}')
        a(f'buffer_load_dwordx4 {v(R[2],4)}, v{vL16}, {srd(S_MISC)}, s{sT1} offen')
        a(f's_lshl_b32 s{sT2}, s{sXCC}, 2'); a(f's_add_u32 s{sT2}, s{sT2}, 128'); a(f'v_mov_b32 v{vPOLL}, s{sT2}')
        a(f's_mov_b32 s{sT3}, 1')
        self.poll(sT3, srdb=S_DBG)
        self.stamp('p0_loaded')
        S1 = [T+16, T+18, T+20]
        for i in range(3):
            r = R[i]; s1 = S1[i]; s2 = s1 + 1
            a(f'v_dot2_f32_bf16 v{s1}, v{r}, s{sONES}, 0'); a(f'v_dot2_f32_bf16 v{s2}, v{r}, v{r}, 0')
            for k in range(1, 4):
                a(f'v_dot2_f32_bf16 v{s1}, v{r+k}, s{sONES}, v{s1}'); a(f'v_dot2_f32_bf16 v{s2}, v{r+k}, v{r+k}, v{s2}')
        U = [T+22, T+23, T+24]
        for i in range(3): a(f'v_permlane32_swap_b32 v{S1[i]}, v{S1[i]+1}')
        for i in range(3): a(f'v_add_f32 v{S1[i]}, v{S1[i]}, v{S1[i]+1}')
        for i in range(3): a(f'v_mov_b32 v{U[i]}, v{S1[i]}')
        for i in range(3): a(f'v_permlane16_swap_b32 v{U[i]}, v{S1[i]}')
        for i in range(3): a(f'v_add_f32 v{S1[i]}, v{S1[i]}, v{U[i]}')
        for sh in (8, 4, 2, 1):
            for i in range(3): a(f'v_add_f32_dpp v{S1[i]}, v{S1[i]}, v{S1[i]} row_ror:{sh} row_mask:0xf bank_mask:0xf')
        XA = T+25; SA = T+26
        a(f'v_lshrrev_b32 v{XA}, 2, v{vLANE}'); a(f'v_lshlrev_b32 v{XA}, 10, v{XA}')
        a(f'v_and_b32 v{SA}, 1, v{vLANE}'); a(f'v_lshlrev_b32 v{SA}, 9, v{SA}'); a(f'v_add_u32 v{XA}, v{XA}, v{SA}')
        a(f'v_and_b32 v{SA}, 2, v{vLANE}'); a(f'v_lshlrev_b32 v{SA}, 2, v{SA}'); a(f'v_add_u32 v{XA}, v{XA}, v{SA}')
        a(f'v_lshlrev_b32 v{SA}, 8, v{vLANE}')
        a(f's_lshr_b32 s{sT0}, s{sSLOT}, 1'); a(f's_and_b32 s{sT1}, s{sSLOT}, 1'); a(f's_lshl_b32 s{sT1}, s{sT1}, 3')
        a(f's_lshl_b32 s{sT2}, s{sWAVE}, 1'); a(f's_add_u32 s{sT1}, s{sT1}, s{sT2}'); a(f's_lshl_b32 s{sT1}, s{sT1}, 4')
        a(f's_lshl_b32 s{sT2}, s{sT0}, 14'); a(f's_add_u32 s{sT2}, s{sT2}, s{sT1}'); a(f's_add_u32 s{sT2}, s{sT2}, {X0:#x}')
        a(f's_lshl_b32 s{sT3}, s{sT0}, 10'); a(f's_add_u32 s{sT3}, s{sT3}, s{sT1}'); a(f's_add_u32 s{sT3}, s{sT3}, {ST0:#x}')
        Q = T+28
        def put(i, sx, ss, off):
            r = R[i]
            a(f'buffer_store_dwordx2 {v(r,2)}, v{XA}, {srd(S_WS)}, s{sx} offen offset:{off}', tag='st')
            a(f'buffer_store_dwordx2 {v(r+2,2)}, v{XA}, {srd(S_WS)}, s{sx} offen offset:{off+256}', tag='st')
            a(f'v_readlane_b32 s{sT4}, v{S1[i]}, 0'); a(f'v_readlane_b32 s{sT5}, v{S1[i]}, 32')
            for k in range(4): a(f'v_mov_b32 v{Q+k}, 0')
            a(f'v_writelane_b32 v{Q}, s{sT4}, 0'); a(f'v_writelane_b32 v{Q+1}, s{sT5}, 0')
            a('s_mov_b64 exec, 0xf')
            a(f'buffer_store_dwordx4 {v(Q,4)}, v{SA}, {srd(S_WS)}, s{ss} offen offset:{off}', tag='st')
            a('s_mov_b64 exec, -1')
        put(0, sT2, sT3, 0); put(1, sT2, sT3, 16)
        Lh = self.lab('nohalo')
        a(f's_cmp_ge_u32 s{sSLOT}, 4'); snap = a.cond_skip(f's_cbranch_scc1 {Lh}')
        a(f's_lshl_b32 s{sT0}, s{sSLOT}, 2'); a(f's_add_u32 s{sT0}, s{sT0}, s{sWAVE}'); a(f's_lshl_b32 s{sT0}, s{sT0}, 4')
        a(f's_add_u32 s{sT2}, s{sT0}, {H0:#x}'); a(f's_add_u32 s{sT3}, s{sT0}, {HS0:#x}')
        put(2, sT2, sT3, 0)
        a('s_waitcnt vmcnt(0)')
        a.cond_join(Lh, snap)
        self.emit_all(self.dma_B1())
        a.wait_vm_tag('st')
        a(f's_mov_b32 s{sT0}, 1'); a(f'v_mov_b32 v{T}, s{sT0}')
        a('s_mov_b64 exec, 1'); a(f'buffer_store_dword v{T}, v{vZERO}, {srd(S_WS)}, s{sFLG} offen'); a('s_mov_b64 exec, -1')
        self.stamp('p0_done')
        P5 = KA + 10
        a(f's_mov_b32 s{S_MISC}, s{P5}'); a(f's_and_b32 s{S_MISC+1}, s{P5+1}, 0xffff'); a(f's_mov_b32 s{S_MISC+2}, {1792*2}'); a(f's_mov_b32 s{S_MISC+3}, 0x20000')
        a(f's_mul_i32 s{sT0}, s{sC}, 224')
        a(f'v_lshrrev_b32 v{T+1}, 4, v{vLANE}'); a(f'v_lshlrev_b32 v{T+1}, 3, v{T+1}')
        for ct in range(7):
            a(f'buffer_load_dwordx2 {v(ACC+2*ct,2)}, v{T+1}, {srd(S_MISC)}, s{sT0} offen offset:{ct*32}')
        a(f's_mov_b32 s{sT1}, {f2u(LOG2E):#x}')
        for ct in range(7):
            for k in range(2):
                a(f'v_lshlrev_b32 v{vBC1+4*ct+2*k}, 16, v{ACC+2*ct+k}'); a(f'v_and_b32 v{vBC1+4*ct+2*k+1}, 0xffff0000, v{ACC+2*ct+k}')
        for i in range(28): a(f'v_mul_f32 v{vBC1+i}, s{sT1}, v{vBC1+i}')
        P7 = KA + 14
        a.wait_all()
        a(f's_mov_b32 s{S_MISC}, s{P7}'); a(f's_and_b32 s{S_MISC+1}, s{P7+1}, 0xffff'); a(f's_mov_b32 s{S_MISC+2}, {2048*512*2}'); a(f's_mov_b32 s{S_MISC+3}, 0x20000')
        self.barrier()
        self.stamp('B1_landed')
        ONE = T+4
        for k in range(4): a(f'v_mov_b32 v{ONE+k}, s{sONES}')
        AT, AV = T+8, T+9
        a(f's_and_b32 s{sT0}, s{sWAVE}, 1'); a(f's_lshl_b32 s{sT0}, s{sT0}, 5'); a(f'v_xor_b32 v{AV}, s{sT0}, v{vR1}')
        a(f's_lshr_b32 s{sT0}, s{sWAVE}, 1'); a(f's_lshl_b32 s{sT0}, s{sT0}, 11'); a(f'v_add_u32 v{AT}, s{sT0}, v{AV}')
        a(f'v_add_u32 v{AV}, 4096, v{AV}')
        accT, accV = ACC, ACC+4
        for k in range(8): a(f'v_mov_b32 v{ACC+k}, 0')
        for s0 in range(0, 16, 4):
            if s0 == 8:
                a(f'v_add_u32 v{AT}, {8*6144}, v{AT}'); a(f'v_add_u32 v{AV}, {8*6144}, v{AV}')
            for half in range(2):
                for ds in range(2):
                    s = s0 + 2*half + ds; so = (s % 8)*6144
                    for h in range(2):
                        a(f'ds_read_b64_tr_b16 {v(WF+16*half+8*ds+2*h,2)}, v{AT} offset:{so+h*1024}')
                        a(f'ds_read_b64_tr_b16 {v(WF+16*half+8*ds+4+2*h,2)}, v{AV} offset:{so+h*1024}')
                for ds in range(2):
                    b = WF+16*half+8*ds
                    a(f'v_mfma_f32_16x16x32_bf16 {v(accT,4)}, {v(b,4)}, {v(ONE,4)}, {v(accT,4)}')
                    a(f'v_mfma_f32_16x16x32_bf16 {v(accV,4)}, {v(ONE,4)}, {v(b+4,4)}, {v(accV,4)}')
        CS = B2
        a(f'v_lshrrev_b32 v{T+10}, 4, v{vLANE}'); a(f'v_lshlrev_b32 v{T+10}, 4, v{T+10}')
        a(f's_lshl_b32 s{sT0}, s{sWAVE}, 6'); a(f's_add_u32 s{sT0}, s{sT0}, {CS}'); a(f'v_add_u32 v{T+11}, s{sT0}, v{T+10}')
        a(f's_mov_b32 exec_lo, 0x00010001'); a(f's_mov_b32 exec_hi, 0x00010001')
        a(f'ds_write_b128 v{T+11}, {v(accT,4)}')
        a('s_mov_b64 exec, 0xffff')
        a(f's_and_b32 s{sT0}, s{sWAVE}, 1'); a(f's_lshl_b32 s{sT0}, s{sT0}, 6'); a(f's_add_u32 s{sT0}, s{sT0}, {CS+256}')
        a(f'v_lshlrev_b32 v{T+12}, 2, v{vLANE}'); a(f'v_add_u32 v{T+12}, s{sT0}, v{T+12}')
        a(f'ds_write_b32 v{T+12}, v{accV}')
        a('s_mov_b64 exec, -1')
        self.barrier()
        a(f'v_add_u32 v{T+10}, {CS}, v{T+10}')
        for hh in range(2):
            a(f'ds_read_b128 {v(vCSQ+4*hh,4)}, v{T+10} offset:{hh*64}')
            a(f'ds_read_b128 {v(vCSK+4*hh,4)}, v{T+10} offset:{128+hh*64}')
        a(f'v_and_b32 v{T+12}, 15, v{vLANE}'); a(f'v_lshlrev_b32 v{T+12}, 2, v{T+12}'); a(f'v_add_u32 v{T+12}, {CS+256}, v{T+12}')
        for hh in range(2): a(f'ds_read_b32 v{vCSV+hh}, v{T+12} offset:{hh*64}')
        self.barrier()
        self.stamp('colsum')
    def poll_addr_x_phase0(self):
        a = self.a; T = TMP
        a(f's_lshl_b32 s{sT0}, s{sGRP}, 3'); a(f's_lshl_b32 s{sT1}, s{sWAVE}, 1'); a(f's_add_u32 s{sT0}, s{sT0}, s{sT1}'); a(f's_lshl_b32 s{sT0}, s{sT0}, 3')
        a(f's_cmp_eq_u32 s{sGRP}, 0'); a(f's_cselect_b32 s{sT1}, 0, 56'); a(f's_cselect_b32 s{sT2}, 15, 7')
        a(f'v_and_b32 v{T+1}, 15, v{vLANE}'); a(f'v_add_u32 v{T+1}, s{sT0}, v{T+1}')
        a(f'v_and_b32 v{T+2}, s{sT2}, v{vLANE}'); a(f'v_add_u32 v{T+2}, s{sT1}, v{T+2}')
        a(f'v_cmp_gt_u32 vcc, 32, v{vLANE}')
        a(f'v_cndmask_b32 v{T+1}, v{T+2}, v{T+1}, vcc')
        a(f'v_lshlrev_b32 v{vPOLL}, 2, v{T+1}')
    def poll_addr_tiles_from_cbs(self, with_halo):
        a = self.a; T = TMP
        a(f's_lshl_b32 s{sT0}, s{sGRP}, 3'); a(f's_lshl_b32 s{sT1}, s{sWAVE}, 1'); a(f's_add_u32 s{sT0}, s{sT0}, s{sT1}')
        a(f's_lshr_b32 s{sT1}, s{sT0}, 2'); a(f's_lshl_b32 s{sT1}, s{sT1}, 3')
        a(f's_and_b32 s{sT0}, s{sT0}, 3')
        a(f's_lshl_b32 s{sT1}, s{sT1}, 2'); a(f's_add_u32 s{sT0}, s{sT0}, s{sT1}')
        a(f'v_and_b32 v{T+1}, 7, v{vLANE}'); a(f'v_lshlrev_b32 v{T+1}, 2, v{T+1}')
        a(f'v_bfe_u32 v{T+2}, v{vLANE}, 3, 1'); a(f'v_add_u32 v{T+1}, v{T+1}, v{T+2}'); a(f'v_add_u32 v{T+1}, s{sT0}, v{T+1}')
        if with_halo:
            a(f'v_and_b32 v{T+2}, 7, v{vLANE}'); a(f'v_lshlrev_b32 v{T+2}, 2, v{T+2}'); a(f'v_add_u32 v{T+2}, 35, v{T+2}')
            a(f'v_cmp_gt_u32 vcc, 32, v{vLANE}')
            a(f's_cmp_eq_u32 s{sGRP}, 0'); a(f's_cselect_b64 vcc, -1, vcc')
            a(f'v_cndmask_b32 v{T+1}, v{T+2}, v{T+1}, vcc')
        a(f'v_lshlrev_b32 v{vPOLL}, 2, v{T+1}')
    def stream(self, mf, reads_after, fillers, pre_waits):
        a = self.a
        fill = {}
        for gap, ins in fillers: fill.setdefault(gap, []).append(ins)
        for i, m in enumerate(mf):
            if i in pre_waits: a.wait_regs(pre_waits[i])
            a(m)
            for r in reads_after.get(i, []): self.emit(r)
            for f in fill.get(i, []): self.emit(f)
        rest = [g for g in fill if g >= len(mf)]
        assert not rest, rest
    @staticmethod
    def spread(L, g0, g1, group=3):
        n = len(L); out = []
        span = g1 - g0
        for i, x in enumerate(L):
            out.append((g0 + (i * span) // n, x))
        return out
    def p1(self):
        a = self.a; T = TMP
        XA = 0; XH = 128
        Lp2 = self.lab('p1l3'); Lpj = self.lab('p1j')
        a(f's_cmp_lg_u32 s{sIT}, 0'); a(f's_cbranch_scc1 {Lp2}')
        self.poll_addr_x_phase0(); a(f's_mov_b32 s{sT3}, 1')
        a(f's_branch {Lpj}')
        a.label(Lp2)
        self.poll_addr_tiles_from_cbs(True); a(f's_mov_b32 s{sT3}, 5')
        a.label(Lpj)
        self.poll(sT3)
        Lr = self.lab('norem')
        a(f's_cmp_eq_u32 s{sIT}, 0'); a(f's_cbranch_scc1 {Lr}')
        a(f's_cmp_lg_u32 s{sGRP}, 0'); a(f's_cbranch_scc1 {Lr}')
        a(f's_cmp_eq_u32 s{sXCC}, 0'); a(f's_cbranch_scc1 {Lr}')
        a(f'v_and_b32 v{vPOLL}, 7, v{vLANE}'); a(f'v_lshlrev_b32 v{vPOLL}, 2, v{vPOLL}'); a(f'v_add_u32 v{vPOLL}, {HFLAG}, v{vPOLL}')
        a(f's_mov_b32 s{sT3}, 1')
        self.poll(sT3)
        a.label(Lr); a.forget()
        self.stamp('p1_ready')
        sX0, sX1, sH, sS = sT0, sT1, sT2, sT3
        a(f's_lshl_b32 s{sT4}, s{sGRP}, 3'); a(f's_lshl_b32 s{sT5}, s{sWAVE}, 1'); a(f's_add_u32 s{sT4}, s{sT4}, s{sT5}')
        a(f's_lshl_b32 s{sX0}, s{sT4}, 14'); a(f's_add_u32 s{sX0}, s{sX0}, s{sIT}'); a(f's_add_u32 s{sX0}, s{sX0}, {X0:#x}'); a(f's_add_u32 s{sX1}, s{sX0}, 16384')
        a(f's_lshl_b32 s{sS}, s{sT4}, 10'); a(f's_add_u32 s{sS}, s{sS}, s{sIT}'); a(f's_add_u32 s{sS}, s{sS}, {ST0:#x}')
        a(f's_mov_b32 s{sH}, {X0 + 7*16384:#x}'); a(f's_mov_b32 s{sXO}, {ST0 + 7*1024:#x}')
        a(f's_cmp_eq_u32 s{sGRP}, 0'); a(f's_cselect_b32 s{sH}, {H0:#x}, s{sH}'); a(f's_cselect_b32 s{sXO}, {HS0:#x}, s{sXO}')
        a(f's_add_u32 s{sH}, s{sH}, s{sIT}'); a(f's_add_u32 s{sXO}, s{sXO}, s{sIT}')
        a(f's_or_b32 s{sT5}, s{sXCC}, s{sGRP}'); a(f's_cmp_eq_u32 s{sT5}, 0')
        a(f's_cselect_b32 s{sT5}, s{sIT}, 0'); a(f's_cmp_lg_u32 s{sT5}, 0')
        a(f's_cselect_b32 s{sH}, 0x7ff00000, s{sH}'); a(f's_cselect_b32 s{sXO}, 0x7ff00000, s{sXO}')
        a(f's_lshl_b32 s{sT5}, s{sWAVE}, 12'); a(f's_add_u32 s{sH}, s{sH}, s{sT5}')
        SQ = [T+16, T+20, T+24]
        def xload(s):
            L = []
            if s % 4 == 0 and s > 0:
                L += [f's_add_u32 s{sX0}, s{sX0}, 4096', f's_add_u32 s{sX1}, s{sX1}, 4096']
            L += [f'buffer_load_dwordx4 {a_(XA+8*s,4)}, v{vL16}, {srd(S_WS)}, s{sX0} offen offset:{(s%4)*1024} sc1',
                  f'buffer_load_dwordx4 {a_(XA+8*s+4,4)}, v{vL16}, {srd(S_WS)}, s{sX1} offen offset:{(s%4)*1024} sc1']
            return L
        D = 4
        for s in range(D): self.emit_all(xload(s))
        a(f'buffer_load_dwordx4 {v(SQ[0],4)}, v{vL16}, {srd(S_WS)}, s{sS} offen sc1')
        a(f'buffer_load_dwordx4 {v(SQ[1],4)}, v{vL16}, {srd(S_WS)}, s{sS} offen offset:1024 sc1')
        a(f'buffer_load_dwordx4 {v(SQ[2],4)}, v{vL16}, {srd(S_WS)}, s{sXO} offen sc1')
        for i in range(64): a(f'v_mov_b32 v{ACC+i}, 0')
        def wread(s, f):
            mat, hh = f >> 1, f & 1
            base = vR1 + hh + (2 if s >= 8 else 0); so = (s % 8)*6144 + mat*2048
            return [f'ds_read_b64_tr_b16 {v(WF+4*f+2*h,2)}, v{base} offset:{so+h*1024}' for h in range(2)]
        for f in range(6): self.emit_all(wread(0, f))
        mf = []; ra = {}; pw = {}; fl = []
        for s in range(16):
            for f in range(6):
                for t in range(2):
                    acc = v(ACC+8*f+4*t, 4); X = a_(XA+8*s+4*t, 4); W = v(WF+4*f, 4)
                    mf.append(f'v_mfma_f32_16x16x32_bf16 {acc}, {W}, {X}, {acc}' if f < 4 else f'v_mfma_f32_16x16x32_bf16 {acc}, {X}, {W}, {acc}')
                if s < 15:
                    r0, r1 = wread(s+1, f)
                    ra.setdefault(len(mf)-1, []).append(r0); ra.setdefault(len(mf), []).append(r1)
            g0 = 12*s
            pw[g0] = v(WF, 12)
            pw[g0+6] = v(WF+12, 8)
            x = xload(s+D) if s + D < 16 else []
            fl += self.spread(x, g0+1, g0+9) if x else []
        hx = [f'buffer_load_dwordx4 {a_(XH+4*i,4)}, v{vL16}, {srd(S_WS)}, s{sH} offen offset:{i*1024} sc1' for i in range(4)]
        fl += self.spread(hx, 12*2+9, 12*6+9)
        fl += self.spread(self.dma_B2(), 12*6, 12*16-2)
        self.stream(mf, ra, fl, pw)
        HA = T
        a(f's_mul_i32 s{sT4}, s{sWAVE}, {4*6144}')
        a(f'v_add_u32 v{HA}, s{sT4}, v{vR1}'); a(f'v_add_u32 v{HA+1}, s{sT4}, v{vR1+1}')
        def hread(i, pc, dst):
            mat, hh = 1 + (pc >> 1), pc & 1
            return [f'ds_read_b64_tr_b16 {v(dst+2*h,2)}, v{HA+hh} offset:{i*6144+mat*2048+h*1024}' for h in range(2)]
        for i in range(2):
            for pc in range(4): self.emit_all(hread(i, pc, WF + 16*i + 4*pc))
        for i in range(4):
            b = WF + 16*(i & 1)
            for pc in range(4):
                acc = v(ACC+48+4*pc, 4); X = a_(XH+4*i, 4); W = v(b+4*pc, 4)
                a(f'v_mfma_f32_16x16x32_bf16 {acc}, {W}, {X}, {acc}' if pc < 2 else f'v_mfma_f32_16x16x32_bf16 {acc}, {X}, {W}, {acc}')
                if i + 2 < 4: self.emit_all(hread(i+2, pc, b+4*pc))
        self.stamp('p1_main')
        RS = [T+2, T+4, T+6]
        for t in range(3): self.stats_finalize(SQ[t], RS[t], RS[t]+1)
        a.wait_vm_tag('B2')
        self.barrier()
        dmaA = self.dma_B3(0)
        SA = T+8
        a(f'v_and_b32 v{SA}, 15, v{vLANE}'); a(f'v_lshlrev_b32 v{SA}, 2, v{SA}')
        a(f'v_bfe_u32 v{SA+1}, v{vLANE}, 4, 1'); a(f'v_lshlrev_b32 v{SA+1}, 6, v{SA+1}'); a(f'v_add_u32 v{SA}, v{SA}, v{SA+1}')
        a(f's_lshl_b32 s{sT4}, s{sWAVE}, 8'); a(f's_add_u32 s{sT4}, s{sT4}, {STS}'); a(f'v_add_u32 v{SA}, s{sT4}, v{SA}')
        a(f'v_and_b32 v{SA+1}, 16, v{vLANE}'); a(f'v_cmp_eq_u32 vcc, 0, v{SA+1}')
        for t in range(2):
            a(f'v_cndmask_b32 v{SA+2}, v{RS[t]+1}, v{RS[t]}, vcc')
            a(f'ds_write_b32 v{SA}, v{SA+2} offset:{t*128}')
        a(f'v_cndmask_b32 v{SA+2}, v{RS[2]+1}, v{RS[2]}, vcc')
        a(f'v_subrev_u32 v{SA+3}, s{sT4}, v{SA}'); a(f'v_add_u32 v{SA+3}, {STS+1024}, v{SA+3}')
        a(f'ds_write_b32 v{SA+3}, v{SA+2}')
        RA = T+9
        a(f'v_lshrrev_b32 v{RA}, 4, v{vLANE}'); a(f'v_lshlrev_b32 v{RA}, 4, v{RA}'); a(f'v_add_u32 v{RA}, s{sT4}, v{RA}')
        VS = WF
        for t in range(2):
            a(f'ds_read_b128 {v(VS+8*t,4)}, v{RA} offset:{t*128}'); a(f'ds_read_b128 {v(VS+8*t+4,4)}, v{RA} offset:{t*128+64}')
        QF = WF+16
        KS = T+10
        VSQ = T+22
        U = WF+24
        k = 0
        def norm_T(accb, cs, t, dst):
            rs = RS[t]
            for pz in range(2):
                u = U + 2*((pz) & 1) + 4*(k & 1)
                a(f'v_pk_mul_f32 {v(u,2)}, {v(cs+2*pz,2)}, {v(rs,2)} op_sel:[0,1] op_sel_hi:[1,1]')
                a(f'v_pk_fma_f32 {v(u,2)}, {v(accb+2*pz,2)}, {v(rs,2)}, {v(u,2)} op_sel_hi:[1,0,1] neg_lo:[0,0,1] neg_hi:[0,0,1]')
                a(f'v_cvt_pk_bf16_f32 v{dst+pz}, v{u}, v{u+1}')
        dq = list(dmaA)
        def drip(n=3):
            for _ in range(n):
                if dq: self.emit(dq.pop(0))
        for h in range(2):
            for t in range(2):
                norm_T(ACC+8*h+4*t, vCSQ+4*h, t, QF+4*h+2*t); k += 1; drip()
        for h in range(2):
            for t in range(2):
                norm_T(ACC+8*(2+h)+4*t, vCSK+4*h, t, KS+6*h+2+2*t); k += 1; drip()
        VQ = ACC
        for h in range(2):
            for t in range(2):
                accb = ACC+8*(4+h)+4*t
                for pz in range(2):
                    u = U + 2*pz + 4*(k & 1)
                    a(f'v_pk_mul_f32 {v(u,2)}, {v(VS+8*t+4+2*pz,2)}, {v(vCSV,2)} op_sel:[0,{h}] op_sel_hi:[1,{h}]')
                    a(f'v_pk_fma_f32 {v(u,2)}, {v(accb+2*pz,2)}, {v(VS+8*t+2*pz,2)}, {v(u,2)} neg_lo:[0,0,1] neg_hi:[0,0,1]')
                    a(f'v_cvt_pk_bf16_f32 v{VQ+6*h+2+2*t+pz}, v{u}, v{u+1}')
                k += 1; drip()
        EA = T+8
        a(f's_lshl_b32 s{sT4}, s{sWAVE}, 11'); a(f's_add_u32 s{sT4}, s{sT4}, {KVX}')
        a(f'v_lshlrev_b32 v{EA}, 3, v{vLANE}'); a(f'v_add_u32 v{EA}, s{sT4}, v{EA}')
        Lw3 = self.lab('w3')
        a(f's_cmp_eq_u32 s{sWAVE}, 3'); snap = a.cond_skip(f's_cbranch_scc1 {Lw3}')
        for h in range(2):
            a(f'ds_write_b64 v{EA}, {v(KS+6*h+4,2)} offset:{h*512}'); a(f'ds_write_b64 v{EA}, {v(VQ+6*h+4,2)} offset:{1024+h*512}')
        a.cond_join(Lw3, snap)
        Lw0 = self.lab('w0')
        a(f's_cmp_eq_u32 s{sWAVE}, 0'); snap = a.cond_skip(f's_cbranch_scc1 {Lw0}')
        a(f's_lshl_b32 s{sT4}, s{sWAVE}, 12'); a(f's_add_u32 s{sT4}, s{sT4}, {HPX-4096}'); a(f'v_add_u32 v{EA+1}, s{sT4}, v{vL16}')
        for pc in range(4): a(f'ds_write_b128 v{EA+1}, {v(ACC+48+4*pc,4)} offset:{pc*1024}')
        a.cond_join(Lw0, snap)
        drip(len(dq))
        self.barrier()
        Lp = self.lab('prevx'); Lq = self.lab('prevj')
        a(f's_cmp_eq_u32 s{sWAVE}, 0'); a(f's_cbranch_scc1 {Lp}')
        a(f'v_subrev_u32 v{EA}, 2048, v{EA}')
        for h in range(2):
            a(f'ds_read_b64 {v(KS+6*h,2)}, v{EA} offset:{h*512}'); a(f'ds_read_b64 {v(VQ+6*h,2)}, v{EA} offset:{1024+h*512}')
        a.wait_lg(0)
        a(f's_branch {Lq}')
        a.label(Lp)
        HB = ACC+16
        a(f'v_add_u32 v{EA}, {HPX}, v{vL16}')
        for w in range(3):
            for pc in range(4): a(f'ds_read_b128 {v(HB+4*pc,4)}, v{EA} offset:{w*4096+pc*1024}')
            for i in range(0, 16, 2): a(f'v_pk_add_f32 {v(ACC+48+i,2)}, {v(ACC+48+i,2)}, {v(HB+i,2)}')
        a(f'v_lshrrev_b32 v{EA+1}, 4, v{vLANE}'); a(f'v_lshlrev_b32 v{EA+1}, 4, v{EA+1}'); a(f'v_add_u32 v{EA+1}, {STS+1024}, v{EA+1}')
        a(f'ds_read_b128 {v(HB,4)}, v{EA+1}'); a(f'ds_read_b128 {v(HB+4,4)}, v{EA+1} offset:64')
        for h in range(2):
            norm_T(ACC+48+4*h, vCSK+4*h, 2, KS+6*h); k += 1
        for h in range(2):
            accb = ACC+56+4*h
            for pz in range(2):
                u = U + 2*pz
                a(f'v_pk_mul_f32 {v(u,2)}, {v(HB+4+2*pz,2)}, {v(vCSV,2)} op_sel:[0,{h}] op_sel_hi:[1,{h}]')
                a(f'v_pk_fma_f32 {v(u,2)}, {v(accb+2*pz,2)}, {v(HB+2*pz,2)}, {v(u,2)} neg_lo:[0,0,1] neg_hi:[0,0,1]')
                a(f'v_cvt_pk_bf16_f32 v{VQ+6*h+pz}, v{u}, v{u+1}')
        a.wait_lg(0)
        a('s_nop 1')
        a.label(Lq); a.forget();
        a.vmq = [(set(), 'B3')]*len([x for x in dmaA if isinstance(x, tuple)])
        self.stamp('p1_exch')
        SB = ACC+16
        c = f2u(0.25*LOG2E)
        a(f's_mov_b32 s{sC1}, {c:#x}')
        for t in range(2):
            for h in range(2):
                b = SB+16*t+8*h; Q = v(QF+4*h+2*t, 2)
                a(f'v_mfma_f32_16x16x16_bf16 {v(b,4)}, {v(KS+6*h+2*t,2)}, {Q}, 0')
                a(f'v_mfma_f32_16x16x16_bf16 {v(b+4,4)}, {v(KS+6*h+2*t+2,2)}, {Q}, 0')
        MX = WF
        for t in range(2):
            mp = vMF if t == 0 else vMP
            for h in range(2):
                b = SB+16*t+8*h
                for pz in range(2):
                    a(f'v_pk_fma_f32 {v(b+2*pz,2)}, {v(b+2*pz,2)}, s[{sC1}:{sC1+1}], {v(mp+2*pz,2)} op_sel_hi:[1,0,1]')
                    a(f'v_pk_fma_f32 {v(b+4+2*pz,2)}, {v(b+4+2*pz,2)}, s[{sC1}:{sC1+1}], {v(vMC+2*pz,2)} op_sel_hi:[1,0,1]')
        for t in range(2):
            for h in range(2):
                b = SB+16*t+8*h; m = MX+2*t+h
                a(f'v_max3_f32 v{m}, v{b}, v{b+1}, v{b+2}'); a(f'v_max3_f32 v{m}, v{m}, v{b+3}, v{b+4}')
                a(f'v_max3_f32 v{m}, v{m}, v{b+5}, v{b+6}'); a(f'v_max_f32 v{m}, v{m}, v{b+7}')
        def red2(op, x, y, u):
            a(f'v_permlane32_swap_b32 v{x}, v{y}'); a(f'{op} v{x}, v{x}, v{y}')
            a(f'v_mov_b32 v{u}, v{x}'); a(f'v_permlane16_swap_b32 v{u}, v{x}'); a(f'{op} v{x}, v{x}, v{u}')
            a(f'v_mov_b32 v{y}, v{x}'); a(f'v_permlane32_swap_b32 v{x}, v{y}')
        for t in range(2): red2('v_max_f32', MX+2*t, MX+2*t+1, MX+4+t)
        for t in range(2):
            for h in range(2):
                b = SB+16*t+8*h; m = MX+2*t
                for pz in range(4):
                    a(f'v_pk_add_f32 {v(b+2*pz,2)}, {v(b+2*pz,2)}, {v(m,2)} op_sel:[0,{h}] op_sel_hi:[1,{h}] neg_lo:[0,1] neg_hi:[0,1]')
                for i in range(8): a(f'v_exp_f32 v{b+i}, v{b+i}')
        SM = WF+8
        PK = ACC+48
        for t in range(2):
            for h in range(2):
                b = SB+16*t+8*h; u = WF+12+2*h
                a(f'v_pk_add_f32 {v(u,2)}, {v(b,2)}, {v(b+2,2)}'); a(f'v_pk_add_f32 {v(u+4,2)}, {v(b+4,2)}, {v(b+6,2)}')
                a(f'v_pk_add_f32 {v(u,2)}, {v(u,2)}, {v(u+4,2)}'); a(f'v_add_f32 v{SM+2*t+h}, v{u}, v{u+1}')
                for pz in range(4): a(f'v_cvt_pk_bf16_f32 v{PK+8*t+4*h+pz}, v{b+2*pz}, v{b+2*pz+1}')
        OB = SB
        for t in range(2):
            for h in range(2):
                a(f'v_mfma_f32_16x16x32_bf16 {v(OB+8*t+4*h,4)}, {v(VQ+6*h+2*t,4)}, {v(PK+8*t+4*h,4)}, 0')
        for t in range(2): red2('v_add_f32', SM+2*t, SM+2*t+1, MX+4+t)
        for i in range(4): a(f'v_rcp_f32 v{SM+i}, v{SM+i}')
        a(f's_lshl_b32 s{sT4}, s{sGRP}, 3'); a(f's_lshl_b32 s{sT5}, s{sWAVE}, 1'); a(f's_add_u32 s{sT4}, s{sT4}, s{sT5}')
        a(f's_lshl_b32 s{sT4}, s{sT4}, 14'); a(f's_lshl_b32 s{sT5}, s{sC}, 10'); a(f's_add_u32 s{sT4}, s{sT4}, s{sT5}')
        a(f's_add_u32 s{sT4}, s{sT4}, s{sIT}'); a(f's_add_u32 s{sT4}, s{sT4}, {O1:#x}'); a(f's_add_u32 s{sT5}, s{sT4}, 16384')
        for t in range(2):
            for h in range(2):
                b = OB+8*t+4*h
                for pz in range(2):
                    a(f'v_pk_mul_f32 {v(b+2*pz,2)}, {v(b+2*pz,2)}, {v(SM+2*t,2)} op_sel:[0,{h}] op_sel_hi:[1,{h}]')
                    a(f'v_cvt_pk_bf16_f32 v{OB+16+4*t+2*h+pz}, v{b+2*pz}, v{b+2*pz+1}')
            a(f'buffer_store_dwordx4 {v(OB+16+4*t,4)}, v{vL16}, {srd(S_WS)}, s{sT4 if t == 0 else sT5} offen', tag='st')
        a(f's_add_u32 s{sT0}, s{sPH}, 2')
        self.set_flag(sT0)
        self.stamp('p1_done')
    def resid_epilogue(self, accb, final_ok, xout_imm, stout_imm, extra=None):
        a = self.a; T = TMP
        dq = list(extra or [])
        def drip(n=3):
            for _ in range(n):
                if dq: self.emit(dq.pop(0))
        U = T+4
        for i in range(8):
            u = U + 2*(i & 1)
            a(f'v_lshlrev_b32 v{u}, 16, v{vRP+i}'); a(f'v_and_b32 v{u+1}, 0xffff0000, v{vRP+i}')
            a(f'v_pk_add_f32 {v(u,2)}, {v(u,2)}, {v(accb+2*i,2)}')
            a(f'v_cvt_pk_bf16_f32 v{vRP+i}, v{u}, v{u+1}')
            if i % 2 == 1: drip()
        a(f's_lshl_b32 s{sT4}, s{sRB}, 2'); a(f's_add_u32 s{sT4}, s{sT4}, s{sWAVE}')
        return drip, dq
    def resid_store_xf(self, xbase, stbase, drip, remote=False):
        a = self.a; T = TMP
        S1, S2, U = T+8, T+9, T+10
        a(f'v_dot2_f32_bf16 v{S1}, v{vRP}, s{sONES}, 0'); a(f'v_dot2_f32_bf16 v{S2}, v{vRP}, v{vRP}, 0')
        for i in range(1, 8):
            a(f'v_dot2_f32_bf16 v{S1}, v{vRP+i}, s{sONES}, v{S1}'); a(f'v_dot2_f32_bf16 v{S2}, v{vRP+i}, v{vRP+i}, v{S2}')
        a(f's_lshl_b32 s{sT0}, s{sT4}, 14'); a(f's_lshl_b32 s{sT1}, s{sCB}, 11'); a(f's_add_u32 s{sT0}, s{sT0}, s{sT1}')
        a(f's_add_u32 s{sT0}, s{sT0}, s{sIT}'); a(f's_add_u32 s{sT0}, s{sT0}, {xbase:#x}')
        a(f'buffer_store_dwordx4 {v(vRP,4)}, v{vL16}, {srd(S_WS)}, s{sT0} offen', tag='st')
        a(f'buffer_store_dwordx4 {v(vRP+4,4)}, v{vL16}, {srd(S_WS)}, s{sT0} offen offset:1024', tag='st')
        a(f'v_permlane32_swap_b32 v{S1}, v{S2}'); a(f'v_add_f32 v{S1}, v{S1}, v{S2}')
        a(f'v_mov_b32 v{U}, v{S1}'); a(f'v_permlane16_swap_b32 v{U}, v{S1}'); a(f'v_add_f32 v{S1}, v{S1}, v{U}')
        a(f's_lshl_b32 s{sT1}, s{sT4}, 10'); a(f's_add_u32 s{sT1}, s{sT1}, s{sIT}'); a(f's_add_u32 s{sT1}, s{sT1}, {stbase:#x}')
        a(f'buffer_store_dword v{S1}, v{vSTO}, {srd(S_WS)}, s{sT1} offen', tag='st')
        return S1
    def p2(self):
        a = self.a; T = TMP
        a(f's_lshl_b32 s{sT0}, s{sRB}, 2'); a(f's_add_u32 s{sT0}, s{sT0}, s{sWAVE}')
        a(f's_and_b32 s{sT1}, s{sT0}, 7'); a(f's_lshr_b32 s{sT1}, s{sT1}, 1')
        a(f's_lshl_b32 s{sT2}, s{sGRP}, 6'); a(f's_add_u32 s{sT1}, s{sT1}, s{sT2}')
        a(f'v_and_b32 v{T+1}, 15, v{vLANE}'); a(f'v_lshlrev_b32 v{T+1}, 2, v{T+1}'); a(f'v_add_u32 v{T+1}, s{sT1}, v{T+1}')
        a(f'v_lshlrev_b32 v{vPOLL}, 2, v{T+1}')
        a(f's_add_u32 s{sT3}, s{sPH}, 2')
        self.poll(sT3)
        self.stamp('p2_ready')
        sX = sT1
        a(f's_lshl_b32 s{sX}, s{sT0}, 14'); a(f's_add_u32 s{sX}, s{sX}, s{sIT}')
        a(f's_lshl_b32 s{sT2}, s{sCB}, 11'); a(f's_add_u32 s{sT2}, s{sT2}, s{sX}'); a(f's_add_u32 s{sT2}, s{sT2}, {X0:#x}')
        a(f's_add_u32 s{sX}, s{sX}, {O1:#x}')
        for s in range(16):
            if s % 4 == 0 and s > 0: a(f's_add_u32 s{sX}, s{sX}, 4096')
            a(f'buffer_load_dwordx4 {a_(4*s,4)}, v{vL16}, {srd(S_WS)}, s{sX} offen offset:{(s%4)*1024} sc1')
        a(f'buffer_load_dwordx4 {v(vRP,4)}, v{vL16}, {srd(S_WS)}, s{sT2} offen sc1')
        a(f'buffer_load_dwordx4 {v(vRP+4,4)}, v{vL16}, {srd(S_WS)}, s{sT2} offen offset:1024 sc1')
        for i in range(16): a(f'v_mov_b32 v{ACC+i}, 0')
        NB = 7
        def rd(n):
            s, ct = divmod(n, 4); b = WF + 4*(n % 8)
            return [f'ds_read_b64_tr_b16 {v(b+2*h,2)}, v{vR2+ct} offset:{s*4096+h*2048}' for h in range(2)]
        for n in range(NB): self.emit_all(rd(n))
        for n in range(64):
            s, ct = divmod(n, 4)
            a(f'v_mfma_f32_16x16x32_bf16 {v(ACC+4*ct,4)}, {v(WF+4*(n%8),4)}, {a_(4*s,4)}, {v(ACC+4*ct,4)}')
            if n + NB < 64: self.emit_all(rd(n+NB))
        self.stamp('p2_main')
        self.barrier()
        drip, dq = self.resid_epilogue(ACC, False, 0, 0, extra=self.dma_B3(1))
        self.resid_store_xf(X1, ST1, drip)
        a.wait_vm_tag('st')
        a(f's_add_u32 s{sT0}, s{sPH}, 3'); a(f'v_mov_b32 v{T}, s{sT0}')
        a('s_mov_b64 exec, 1'); a(f'buffer_store_dword v{T}, v{vZERO}, {srd(S_WS)}, s{sFLG} offen'); a('s_mov_b64 exec, -1')
        drip(len(dq))
        self.stamp('p2_done')
    def p3(self):
        a = self.a; T = TMP
        a.wait_vm_tag('B3')
        self.barrier()
        Lc = self.lab('nocs')
        a(f's_cmp_lg_u32 s{sIT}, 0'); snap = a.cond_skip(f's_cbranch_scc1 {Lc}')
        ONE = T+4
        for k in range(4): a(f'v_mov_b32 v{ONE+k}, s{sONES}')
        A0, A1 = T+8, T+9
        a(f's_lshl_b32 s{sT0}, s{sWAVE}, 5'); a(f'v_add_u32 v{A0}, s{sT0}, v{vR3}'); a(f'v_add_u32 v{A1}, s{sT0}, v{vR3+1}')
        for k in range(8): a(f'v_mov_b32 v{ACC+k}, 0')
        for s0 in range(0, 16, 2):
            for ds in range(2):
                s = s0 + ds; base = A0 if s < 9 else A1; so = (s if s < 9 else s - 9)*7168
                for q in range(2):
                    for h in range(2):
                        a(f'ds_read_b64_tr_b16 {v(WF+16*((s0>>1)&1)+8*ds+4*q+2*h,2)}, v{base} offset:{so+h*3584+q*128}')
            for ds in range(2):
                for q in range(2):
                    b = WF+16*((s0>>1)&1)+8*ds+4*q
                    a(f'v_mfma_f32_16x16x32_bf16 {v(ACC+4*q,4)}, {v(b,4)}, {v(ONE,4)}, {v(ACC+4*q,4)}')
        CS = B4HI
        a(f'v_lshrrev_b32 v{T+10}, 4, v{vLANE}'); a(f'v_lshlrev_b32 v{T+10}, 4, v{T+10}'); a(f'v_add_u32 v{T+10}, {CS}, v{T+10}')
        a(f's_lshl_b32 s{sT0}, s{sWAVE}, 6'); a(f'v_add_u32 v{T+11}, s{sT0}, v{T+10}')
        a(f's_mov_b32 exec_lo, 0x00010001'); a(f's_mov_b32 exec_hi, 0x00010001')
        a(f'ds_write_b128 v{T+11}, {v(ACC,4)}'); a(f'ds_write_b128 v{T+11}, {v(ACC+4,4)} offset:256')
        a('s_mov_b64 exec, -1')
        self.barrier()
        for ct in range(7): a(f'ds_read_b128 {v(vCS1+4*ct,4)}, v{T+10} offset:{ct*64}')
        self.barrier()
        a.cond_join(Lc, snap)
        self.poll_addr_tiles_from_cbs(False); a(f's_add_u32 s{sT3}, s{sPH}, 3')
        self.poll(sT3)
        self.stamp('p3_ready')
        sX0, sX1, sS = sT0, sT1, sT3
        a(f's_lshl_b32 s{sT4}, s{sGRP}, 3'); a(f's_lshl_b32 s{sT5}, s{sWAVE}, 1'); a(f's_add_u32 s{sT4}, s{sT4}, s{sT5}')
        a(f's_lshl_b32 s{sX0}, s{sT4}, 14'); a(f's_add_u32 s{sX0}, s{sX0}, s{sIT}'); a(f's_add_u32 s{sX0}, s{sX0}, {X1:#x}'); a(f's_add_u32 s{sX1}, s{sX0}, 16384')
        a(f's_lshl_b32 s{sS}, s{sT4}, 10'); a(f's_add_u32 s{sS}, s{sS}, s{sIT}'); a(f's_add_u32 s{sS}, s{sS}, {ST1:#x}')
        SQ = [T+16, T+20]
        def xload(s):
            L = []
            if s % 4 == 0 and s > 0:
                L += [f's_add_u32 s{sX0}, s{sX0}, 4096', f's_add_u32 s{sX1}, s{sX1}, 4096']
            L += [f'buffer_load_dwordx4 {a_(8*s,4)}, v{vL16}, {srd(S_WS)}, s{sX0} offen offset:{(s%4)*1024} sc1',
                  f'buffer_load_dwordx4 {a_(8*s+4,4)}, v{vL16}, {srd(S_WS)}, s{sX1} offen offset:{(s%4)*1024} sc1']
            return L
        D = 4
        for s in range(D): self.emit_all(xload(s))
        a(f'buffer_load_dwordx4 {v(SQ[0],4)}, v{vL16}, {srd(S_WS)}, s{sS} offen sc1')
        a(f'buffer_load_dwordx4 {v(SQ[1],4)}, v{vL16}, {srd(S_WS)}, s{sS} offen offset:1024 sc1')
        for i in range(56): a(f'v_mov_b32 v{ACC+i}, 0')
        def wread(s, ct):
            base = vR3 if s < 9 else vR3+1; so = (s if s < 9 else s - 9)*7168 + ct*32
            return [f'ds_read_b64_tr_b16 {v(WF+4*ct+2*h,2)}, v{base} offset:{so+h*3584}' for h in range(2)]
        for ct in range(7): self.emit_all(wread(0, ct))
        mf = []; ra = {}; pw = {}; fl = []
        for s in range(16):
            for ct in range(7):
                for t in range(2):
                    acc = v(ACC+8*ct+4*t, 4)
                    mf.append(f'v_mfma_f32_16x16x32_bf16 {acc}, {v(WF+4*ct,4)}, {a_(8*s+4*t,4)}, {acc}')
                if s < 15:
                    r0, r1 = wread(s+1, ct)
                    ra.setdefault(len(mf)-1, []).append(r0); ra.setdefault(len(mf), []).append(r1)
            g0 = 14*s
            pw[g0] = v(WF, 12); pw[g0+6] = v(WF+12, 12)
            x = xload(s+D) if s + D < 16 else []
            fl += self.spread(x, g0+1, g0+9) if x else []
        hi = self.dma_B4(0) + self.dma_B4(1) + self.dma_B4(2)
        fl += self.spread(hi, 14*8, 14*16-2)
        self.stream(mf, ra, fl, pw)
        self.stamp('p3_main')
        RS = [T+2, T+4]
        for t in range(2): self.stats_finalize(SQ[t], RS[t], RS[t]+1)
        a(f's_mov_b32 s{sC1}, {f2u(LOG2E):#x}')
        for t in range(2):
            a(f'v_mul_f32 v{RS[t]}, s{sC1}, v{RS[t]}'); a(f'v_mul_f32 v{RS[t]+1}, s{sC1}, v{RS[t]+1}')
        self.barrier()
        dq = []
        for n in range(3, 9): dq += self.dma_B4(n)
        def drip(n=3):
            for _ in range(n):
                if dq: self.emit(dq.pop(0))
        a(f's_lshl_b32 s{sT4}, s{sGRP}, 3'); a(f's_lshl_b32 s{sT5}, s{sWAVE}, 1'); a(f's_add_u32 s{sT4}, s{sT4}, s{sT5}')
        a(f's_mul_i32 s{sT4}, s{sT4}, 57344'); a(f's_add_u32 s{sT4}, s{sT4}, s{sIT}'); a(f's_add_u32 s{sT4}, s{sT4}, {ACT1:#x}')
        a(f's_lshr_b32 s{sT5}, s{sC}, 1'); a(f's_mul_i32 s{sT5}, s{sT5}, 7168'); a(f's_add_u32 s{sT4}, s{sT4}, s{sT5}')
        a(f's_and_b32 s{sT5}, s{sC}, 1')
        a(f's_mul_i32 s{sT0}, s{sT5}, 3072'); a(f's_add_u32 s{sT0}, s{sT0}, s{sT4}')
        a(f's_lshl_b32 s{sT1}, s{sT5}, 3'); a(f's_add_u32 s{sT1}, s{sT1}, s{sT4}'); a(f's_add_u32 s{sT1}, s{sT1}, 6144')
        a(f's_add_u32 s{sT2}, s{sT0}, 57344'); a(f's_add_u32 s{sT3}, s{sT1}, 57344')
        a(f's_mov_b32 s{sC1}, {f2u(-2*LN2):#x}'); a(f's_mov_b32 s{sC2}, {f2u(LN2):#x}')
        assert sC2 == sC1 + 1
        LNV = T+6
        a(f'v_mov_b32 v{LNV}, s{sC2}'); a(f'v_mov_b32 v{LNV+1}, s{sC2}')
        OUTQ = [WF, WF+4]
        SC = WF+8
        k = 0
        for t in range(2):
            rs = RS[t]
            for ct in range(7):
                q = OUTQ[(ct >> 1) & 1]
                accb = ACC+8*ct+4*t
                y = [SC+8*0, SC+8*0+2]; e = [SC+4, SC+6]; d = [SC+8, SC+10];
                for pz in range(2):
                    a(f'v_pk_fma_f32 {v(y[pz],2)}, {v(vCS1+4*ct+2*pz,2)}, {v(rs,2)}, {v(vBC1+4*ct+2*pz,2)} op_sel:[0,1,0] op_sel_hi:[1,1,1] neg_lo:[0,1,0] neg_hi:[0,1,0]')
                for pz in range(2):
                    a(f'v_pk_fma_f32 {v(y[pz],2)}, {v(accb+2*pz,2)}, {v(rs,2)}, {v(y[pz],2)} op_sel_hi:[1,0,1]')
                for pz in range(2):
                    a(f'v_exp_f32 v{e[pz]}, v{y[pz]}'); a(f'v_exp_f32 v{e[pz]+1}, v{y[pz]+1}')
                for pz in range(2):
                    a(f'v_pk_add_f32 {v(d[pz],2)}, {v(e[pz],2)}, 2.0 op_sel_hi:[1,0]')
                for pz in range(2):
                    a(f'v_pk_fma_f32 {v(d[pz],2)}, {v(e[pz],2)}, {v(d[pz],2)}, 2.0 op_sel_hi:[1,1,0]')
                for pz in range(2):
                    a(f'v_rcp_f32 v{d[pz]}, v{d[pz]}'); a(f'v_rcp_f32 v{d[pz]+1}, v{d[pz]+1}')
                for pz in range(2):
                    a(f'v_pk_fma_f32 {v(d[pz],2)}, {v(d[pz],2)}, s[{sC1}:{sC1+1}], {v(LNV,2)} op_sel_hi:[1,0,1]')
                for pz in range(2):
                    a(f'v_pk_mul_f32 {v(y[pz],2)}, {v(y[pz],2)}, {v(d[pz],2)}')
                for pz in range(2):
                    a(f'v_cvt_pk_bf16_f32 v{q+2*(ct&1)+pz}, v{y[pz]}, v{y[pz]+1}')
                drip(6)
                if ct & 1:
                    a(f'buffer_store_dwordx4 {v(q,4)}, v{vL16}, {srd(S_WS)}, s{sT0 if t == 0 else sT2} offen offset:{(ct>>1)*1024}', tag='st')
                if ct == 6:
                    a(f'buffer_store_dwordx2 {v(q,2)}, v{vL16}, {srd(S_WS)}, s{sT1 if t == 0 else sT3} offen', tag='st')
        drip(len(dq))
        a(f's_add_u32 s{sT0}, s{sPH}, 4')
        self.set_flag(sT0)
        self.stamp('p3_done')
    def p4(self):
        a = self.a; T = TMP
        a(f's_lshl_b32 s{sT0}, s{sGRP}, 4'); a(f's_lshl_b32 s{sT1}, s{sWAVE}, 2'); a(f's_add_u32 s{sT0}, s{sT0}, s{sT1}'); a(f's_lshl_b32 s{sT0}, s{sT0}, 2')
        a(f's_and_b32 s{sT1}, s{sRB}, 1'); a(f's_lshl_b32 s{sT1}, s{sT1}, 1'); a(f's_add_u32 s{sT0}, s{sT0}, s{sT1}')
        a(f'v_and_b32 v{T+1}, 3, v{vLANE}'); a(f'v_lshlrev_b32 v{T+1}, 2, v{T+1}'); a(f'v_bfe_u32 v{T+2}, v{vLANE}, 2, 1')
        a(f'v_add_u32 v{T+1}, v{T+1}, v{T+2}'); a(f'v_add_u32 v{T+1}, s{sT0}, v{T+1}'); a(f'v_lshlrev_b32 v{vPOLL}, 2, v{T+1}')
        a(f's_add_u32 s{sT3}, s{sPH}, 4')
        self.poll(sT3)
        self.stamp('p4_ready')
        sX = [sT0, sT1, sT2, sT3]
        for tl in range(4):
            a(f's_add_u32 s{sT4}, s{sWAVE}, {tl}'); a(f's_and_b32 s{sT4}, s{sT4}, 3'); a(f's_lshl_b32 s{sT5}, s{sRB}, 2'); a(f's_add_u32 s{sT4}, s{sT4}, s{sT5}')
            a(f's_mul_i32 s{sT4}, s{sT4}, 57344'); a(f's_mul_i32 s{sT5}, s{sWAVE}, {14*1024}'); a(f's_add_u32 s{sT4}, s{sT4}, s{sT5}')
            a(f's_add_u32 s{sT4}, s{sT4}, s{sIT}'); a(f's_add_u32 s{sX[tl]}, s{sT4}, {ACT1:#x}')
        def xload(n):
            L = []
            if n % 4 == 0 and n > 0: L += [f's_add_u32 s{sX[tl]}, s{sX[tl]}, 4096' for tl in range(4)]
            L += [f'buffer_load_dwordx4 {a_(16*n+4*tl,4)}, v{vL16}, {srd(S_WS)}, s{sX[tl]} offen offset:{(n%4)*1024} sc1' for tl in range(4)]
            return L
        D = 3
        for n in range(D): self.emit_all(xload(n))
        for i in range(64): a(f'v_mov_b32 v{ACC+i}, 0')
        def wread(n, ct):
            part, off = self.b4_slot(n); base = (vR4H if part == 'H' else vR4L) + ct
            return [f'ds_read_b64_tr_b16 {v(WF+16*(n&1)+4*ct+2*h,2)}, v{base} offset:{off+h*2048}' for h in range(2)]
        for ct in range(4): self.emit_all(wread(0, ct))
        for n in range(14):
            nxt = []
            if n + 1 < 14:
                if n + 1 >= 9: nxt.append(('WAIT', f'B4_{n+1}'))
                for ct in range(4): nxt += wread(n+1, ct)
            fill = []
            if n + D < 14: fill += xload(n+D)
            if 1 <= n <= 5: fill += self.dma_B4(9 + n - 1)
            seq = nxt + fill
            m = 0
            for ct in range(4):
                for tl in range(4):
                    acc = v(ACC+16*tl+4*ct, 4)
                    a(f'v_mfma_f32_16x16x32_bf16 {acc}, {v(WF+16*(n&1)+4*ct,4)}, {a_(16*n+4*tl,4)}, {acc}')
                    m += 1
                    k = 2 if len(seq) > (16 - m) else 1
                    for _ in range(k):
                        if seq:
                            x = seq.pop(0)
                            if isinstance(x, tuple) and x[0] == 'WAIT': a.wait_vm_tag(x[1])
                            else: self.emit(x)
            for x in seq:
                if isinstance(x, tuple) and x[0] == 'WAIT': a.wait_vm_tag(x[1])
                else: self.emit(x)
        self.stamp('p4_main')
        RA = T+1
        a(f'v_add_u32 v{RA}, s{sB4L}, v{vL16}')
        for tl in range(1, 4):
            for ct in range(4): a(f'ds_write_b128 v{RA}, {v(ACC+16*tl+4*ct,4)} offset:{(tl-1)*4096+ct*1024}')
        self.barrier()
        for tl in range(1, 4):
            a(f's_sub_u32 s{sT4}, s{sWAVE}, {tl}'); a(f's_and_b32 s{sT4}, s{sT4}, 3'); a(f's_mul_i32 s{sT4}, s{sT4}, 24576')
            a(f'v_add_u32 v{RA+tl}, s{sT4}, v{vL16}')
            for ct in range(4): a(f'ds_read_b128 {v(ACC+16*tl+4*ct,4)}, v{RA+tl} offset:{(tl-1)*4096+ct*1024}')
        for tl in range(1, 4):
            for i in range(0, 16, 2): a(f'v_pk_add_f32 {v(ACC+i,2)}, {v(ACC+i,2)}, {v(ACC+16*tl+i,2)}')
        self.barrier()
        self.stamp('p4_red')
        Lf = self.lab('final')
        a(f's_cmp_lg_u32 s{sIT}, 0'); a(f's_cbranch_scc1 {Lf}')
        drip, dq = self.resid_epilogue(ACC, False, 0, 0, extra=self.dma_B1())
        S1 = self.resid_store_xf(X0 + DELTA, ST0 + DELTA, drip)
        Lnh = self.lab('nohalo2')
        a(f's_cmp_lg_u32 s{sRB}, 3'); snap = a.cond_skip(f's_cbranch_scc1 {Lnh}')
        a(f's_cmp_lg_u32 s{sWAVE}, 3'); a(f's_cbranch_scc1 {Lnh}')
        a(f's_cmp_eq_u32 s{sXCC}, 7'); a(f's_cbranch_scc1 {Lnh}')
        a(f's_lshl_b32 s{sT0}, s{sCB}, 11'); a(f's_add_u32 s{sT0}, s{sT0}, {H0 + DELTA:#x}')
        a(f'buffer_store_dwordx4 {v(vRP,4)}, v{vL16}, {srd(S_RM)}, s{sT0} offen sc1')
        a(f'buffer_store_dwordx4 {v(vRP+4,4)}, v{vL16}, {srd(S_RM)}, s{sT0} offen offset:1024 sc1')
        a(f's_mov_b32 s{sT1}, {HS0 + DELTA:#x}')
        a(f'buffer_store_dword v{S1}, v{vSTO}, {srd(S_RM)}, s{sT1} offen sc1')
        a(f's_add_u32 s{sT2}, s{sXCC}, 1'); a(f's_lshl_b32 s{sT2}, s{sT2}, 2'); a(f's_add_u32 s{sT2}, s{sT2}, 64'); a(f'v_mov_b32 v{vPOLL}, s{sT2}')
        a(f's_mov_b32 s{sT3}, 1')
        self.poll(sT3, srdb=S_DBG)
        a(f'v_mov_b32 v{T}, 1'); a(f's_lshl_b32 s{sT0}, s{sCB}, 2'); a(f's_add_u32 s{sT0}, s{sT0}, {HFLAG}')
        a('s_mov_b64 exec, 1'); a(f'buffer_store_dword v{T}, v{vZERO}, {srd(S_RM)}, s{sT0} offen sc1'); a('s_mov_b64 exec, -1')
        a('s_waitcnt vmcnt(0)')
        a.cond_join(Lnh, snap)
        drip(len(dq))
        a(f's_mov_b32 s{sT0}, 5')
        self.set_flag(sT0)
        self.barrier()
        self.stamp('p4_done')
        a(f's_mov_b32 s{sIT}, {DELTA:#x}'); a(f's_mov_b32 s{sPH}, 5')
        a.wait_all()
        a('s_branch L_iter')
        a.label(Lf); a.forget()
        drip, dq = self.resid_epilogue(ACC, True, 0, 0)
        a(f's_lshl_b32 s{sT0}, s{sXCC}, 4'); a(f's_add_u32 s{sT0}, s{sT0}, s{sT4}'); a(f's_lshl_b32 s{sT0}, s{sT0}, 14')
        for q in range(2):
            a(f'v_permlane16_swap_b32 v{vRP+4*q}, v{vRP+4*q+2}'); a(f'v_permlane16_swap_b32 v{vRP+4*q+1}, v{vRP+4*q+3}')
        for q in range(2):
            a(f'buffer_store_dwordx4 {v(vRP+4*q,4)}, v{vOUT}, {srd(S_MISC)}, s{sT0} offen offset:{64*q}')
        self.stamp('end')
    def build(self):
        a = self.a
        self.prologue()
        stop = self.stop
        self.phase0()
        a.wait_all()
        a.label('L_iter')
        if stop != 'p0':
            self.p1()
            if stop != 'p1':
                self.p2()
                if stop != 'p2':
                    self.p3()
                    if stop != 'p3':
                        self.p4()
        a.wait_all(force=True)
        a.label('L_end')
        a('s_endpgm')
        body = a.text()
        hdr = open(os.path.join(os.path.dirname(os.path.abspath(__file__)), 'header.txt')).read()
        return hdr + f"""; @launch grid=(256,1,1) block=(256,1,1) lds={LDS_BYTES}
.amdgcn_target "amdgcn-amd-amdhsa--gfx950"
.text
.globl {KNAME}
.p2align 8
.type {KNAME},@function
{KNAME}:
{body}.section .rodata,"a"
.p2align 6
.amdhsa_kernel {KNAME}
  .amdhsa_next_free_vgpr 512
  .amdhsa_next_free_sgpr 102
  .amdhsa_accum_offset 256
  .amdhsa_group_segment_fixed_size 0
  .amdhsa_kernarg_size 80
  .amdhsa_user_sgpr_count 2
  .amdhsa_user_sgpr_kernarg_segment_ptr 1
  .amdhsa_system_sgpr_workgroup_id_x 1
.end_amdhsa_kernel
"""

if __name__ == '__main__':
    import argparse
    ap = argparse.ArgumentParser()
    ap.add_argument('-o', default='cdna_kernels/' + NAME + '.s')
    ap.add_argument('--stop', default=None); ap.add_argument('--ts', action='store_true')
    args = ap.parse_args()
    g = Gen(stop=args.stop, ts=args.ts)
    txt = g.build()
    open(args.o, 'w').write(txt)
    print(f'wrote {args.o}: {g.a.n_ins} instructions, {g.a.n_nops} nops, {g.a.n_waits} waits, max vm queue {g.a.maxvm}, {len(txt)} bytes', file=sys.stderr)
    if args.ts: print('stamps:', g.names, file=sys.stderr)
```

```python
import re

REG_RE = re.compile(r'(?<![\w.])([vas])(?:(\d+)|\[(\d+):(\d+)\])(?![\w])')

def regs_of(tok):
    out = set()
    for m in REG_RE.finditer(tok):
        f = m.group(1)
        if m.group(2) is not None: out.add((f, int(m.group(2))))
        else:
            for i in range(int(m.group(3)), int(m.group(4)) + 1): out.add((f, i))
    t = tok.strip()
    if t in ('vcc',): out |= {('s', 106), ('s', 107)}
    if t == 'exec': out |= {('s', 126), ('s', 127)}
    if t == 'm0': out.add(('s', 124))
    return out

TRANS = ('v_exp_f32', 'v_log_f32', 'v_rcp_f32', 'v_rsq_f32', 'v_sqrt_f32', 'v_sin_f32', 'v_cos_f32')

class Ins:
    __slots__ = ('text', 'op', 'dst', 'src', 'kind', 'tag', 'srcC', 'isdpp')
    def __init__(self, text, tag=None):
        self.text = text; self.tag = tag
        t = text.split(';')[0].strip()
        parts = t.split(None, 1)
        self.op = parts[0]
        ops = []
        if len(parts) > 1:
            depth = 0; cur = ''
            for ch in parts[1]:
                if ch == '[': depth += 1
                if ch == ']': depth -= 1
                if ch == ',' and depth == 0: ops.append(cur.strip()); cur = ''
                else: cur += ch
            ops.append(cur.strip())
        mods = ''
        if ops:
            last = ops[-1].split(None, 1)
            ops[-1] = last[0]
            mods = last[1] if len(last) > 1 else ''
        op = self.op
        R = [regs_of(o) for o in ops]
        U = lambda L: set().union(*L) if L else set()
        self.dst = set(); self.src = set(); self.srcC = set(); self.isdpp = ('dpp' in op) or ('row_' in mods) or ('quad_perm' in mods)
        if op.startswith('v_mfma'):
            self.kind = 'mfma'; self.dst = R[0]; self.src = U(R[1:3]); self.srcC = R[3]
        elif op.startswith('v_cmp'):
            self.kind = 'valu'; self.dst = R[0]; self.src = U(R[1:])
        elif op in ('v_readfirstlane_b32', 'v_readlane_b32'):
            self.kind = 'valu'; self.dst = R[0]; self.src = U(R[1:])
        elif op.startswith('v_permlane'):
            self.kind = 'valu'; self.dst = U(R[:2]); self.src = U(R[:2])
        elif op.startswith('v_fmac') or op.startswith('v_dot2c') or op == 'v_writelane_b32':
            self.kind = 'valu'; self.dst = R[0]; self.src = U(R)
        elif op.startswith('v_'):
            self.kind = 'valu'; self.dst = R[0]; self.src = U(R[1:])
        elif op.startswith('buffer_load') or op.startswith('global_load'):
            if ' lds' in (' ' + mods) or op.startswith('global_load_lds'):
                self.kind = 'dma'; self.src = U(R) | {('s', 124)}
            else:
                self.kind = 'vload'; self.dst = R[0]; self.src = U(R[1:])
        elif op.startswith('buffer_store') or op.startswith('global_store'):
            self.kind = 'vstore'; self.src = U(R)
        elif op.startswith('buffer_atomic'):
            self.kind = 'vload' if 'sc0' in mods else 'vstore'
            if self.kind == 'vload': self.dst = R[0]
            self.src = U(R)
        elif op.startswith('ds_read') or op.startswith('ds_bpermute') or op.startswith('ds_swizzle'):
            self.kind = 'dsread'; self.dst = R[0]; self.src = U(R[1:])
        elif op.startswith('ds_write'):
            self.kind = 'dswrite'; self.src = U(R)
        elif op in ('s_waitcnt', 's_barrier', 's_nop', 's_branch', 's_endpgm', 's_setprio', 's_sleep') or op.startswith('s_cbranch'):
            self.kind = 'sctl'
        elif op.startswith('s_cmp') or op.startswith('s_bitcmp'):
            self.kind = 'salu'; self.src = U(R)
        elif op.startswith('s_load') or op.startswith('s_memtime') or op.startswith('s_memrealtime') or op.startswith('s_atomic'):
            self.kind = 'smem'; self.dst = R[0]; self.src = U(R[1:])
        elif op.startswith('s_'):
            self.kind = 'salu'; self.dst = R[0]; self.src = U(R[1:])
            if op in ('s_addk_i32', 's_mulk_i32'): self.src |= R[0]
        else:
            raise ValueError('unknown instruction: ' + text)

class Asm:
    def __init__(self):
        self.out = []
        self.vmq = []
        self.lgq = []
        self.hist = []
        self.alts = []
        self.n_nops = 0; self.n_waits = 0; self.n_ins = 0
        self.smem_pending = False; self.nvm = 0; self.nlg = 0; self.maxvm = 0
    def raw(self, text): self.out.append(text)
    def comment(self, text): self.out.append('; ' + text)
    def label(self, name):
        self.out.append(name + ':')
    def _wait(self, vm=None, lg=None):
        parts = []
        if vm is not None:
            n = min(vm, 63); parts.append(f'vmcnt({n})'); self.vmq = self.vmq[len(self.vmq) - n:] if n < len(self.vmq) and n > 0 else ([] if n == 0 else self.vmq)
        if lg is not None:
            if lg > 0 and self.smem_pending and not getattr(self, 'allow_smem_wait', False): raise RuntimeError('counted lgkmcnt with scalar loads pending')
            n = min(lg, 15); parts.append(f'lgkmcnt({n})'); self.lgq = self.lgq[len(self.lgq) - n:] if n < len(self.lgq) and n > 0 else ([] if n == 0 else self.lgq)
            if n == 0: self.smem_pending = False
        self._put(Ins('s_waitcnt ' + ' '.join(parts))); self.n_waits += 1
    def _put_raw_wait(self, n):
        self._put(Ins(f's_waitcnt lgkmcnt({n})'))
    def wait_vm(self, n=0):
        if len(self.vmq) > n: self._wait(vm=n)
    def wait_lg(self, n=0):
        if len(self.lgq) > n or (n == 0 and self.smem_pending): self._wait(lg=n)
    def wait_all(self, force=False):
        if force or self.vmq or self.lgq or self.smem_pending: self._wait(vm=0, lg=0)
    def wait_vm_tag(self, tag):
        idx = max((i for i, (d, t) in enumerate(self.vmq) if t == tag), default=None)
        if idx is not None: self._wait(vm=len(self.vmq) - 1 - idx)
    def wait_lg_tag(self, tag):
        idx = max((i for i, (d, t) in enumerate(self.lgq) if t == tag), default=None)
        if idx is not None: self._wait(lg=len(self.lgq) - 1 - idx)
    def wait_regs(self, regs):
        rs = regs_of(regs) if isinstance(regs, str) else regs
        self._need(rs)
    def _need(self, rs):
        vi = max((i for i, (d, t) in enumerate(self.vmq) if d & rs), default=None)
        li = max((i for i, (d, t) in enumerate(self.lgq) if d & rs), default=None)
        if vi is not None or li is not None:
            self._wait(vm=None if vi is None else len(self.vmq) - 1 - vi, lg=None if li is None else len(self.lgq) - 1 - li)
    def forget(self):
        self.vmq = []; self.lgq = []; self.smem_pending = False
    def _states_since(self, pred):
        best = None
        for hist in [self.hist] + self.alts:
            n = 0
            for h in reversed(hist):
                if isinstance(h, int): n += h; continue
                if pred(h):
                    best = n if best is None else min(best, n); break
                n += 1
                if n > 12: break
        return best
    def snapshot(self):
        return (list(self.vmq), list(self.lgq), list(self.hist), self.nvm, self.nlg)
    def cond_skip(self, branch_text):
        self(branch_text)
        return self.snapshot()
    def cond_join(self, label, snap):
        if len(self.vmq) > 0 and self.nvm != snap[3]: self._wait(vm=0)
        if len(self.lgq) > 0 and self.nlg != snap[4]: self._wait(lg=0)
        self.out.append(label + ':')
        self.vmq, self.lgq = list(snap[0]), list(snap[1])
        self.alts.append(list(snap[2]))
    def _hazard_need(self, I):
        need = 0
        def chk(pred, req):
            nonlocal need
            s = self._states_since(pred)
            if s is not None and s < req: need = max(need, req - s)
        isv = lambda r: r[0] in 'va'
        vsrc = {r for r in I.src if isv(r)}; vdst = {r for r in I.dst if isv(r)}
        ssrc = {r for r in I.src if r[0] == 's'}
        if I.kind == 'mfma':
            allsrc = vsrc | {r for r in I.srcC if isv(r)}
            chk(lambda h: h.kind == 'valu' and h.dst & allsrc, 2)
            chk(lambda h: h.kind == 'mfma' and h.dst & vsrc, 8)
            chk(lambda h: h.kind == 'mfma' and (h.dst & I.srcC) and h.dst != I.srcC, 6)
            chk(lambda h: h.kind == 'mfma' and (h.dst & I.dst) and h.dst != I.srcC, 8)
        if I.kind == 'valu':
            chk(lambda h: h.kind == 'mfma' and h.dst & (vsrc | vdst), 8)
            chk(lambda h: h.kind == 'mfma' and h.srcC & vdst, 3)
            chk(lambda h: h.kind == 'valu' and h.op.startswith(TRANS) and h.dst & vsrc and not I.op.startswith(TRANS), 1)
            chk(lambda h: h.kind == 'valu' and h.op.startswith(TRANS) and h.dst & vsrc, 1)
            if I.op.startswith('v_dot2'):
                ops = I.text.split(None, 1)[1].split(',')
                ab = regs_of(ops[1]) | regs_of(ops[2])
                chk(lambda h: h.kind == 'valu' and h.op.startswith('v_dot2') and h.dst & ab, 3)
            else:
                chk(lambda h: h.kind == 'valu' and h.op.startswith('v_dot2') and h.dst & (vsrc | vdst), 3)
            if I.op.startswith('v_permlane') or I.isdpp: chk(lambda h: h.kind == 'valu' and h.dst & vsrc, 2)
            if I.op in ('v_readfirstlane_b32', 'v_readlane_b32'): chk(lambda h: h.kind == 'valu' and h.dst & vsrc, 1)
            chk(lambda h: h.kind == 'valu' and {r for r in h.dst if r[0] == 's'} & ssrc, 2)
            if I.op in ('v_readlane_b32', 'v_writelane_b32'): chk(lambda h: h.kind == 'valu' and {r for r in h.dst if r[0] == 's'} & ssrc, 4)
            chk(lambda h: h.kind == 'vstore' and ('x4' in h.op or 'x3' in h.op) and h.src & vdst, 2)
            chk(lambda h: h.kind == 'dswrite' and ('b128' in h.op) and h.src & vdst, 2)
        if I.kind in ('vload', 'vstore', 'dma', 'dsread', 'dswrite'):
            chk(lambda h: h.kind == 'valu' and h.op.startswith('v_dot2') and h.dst & vsrc, 3)
            chk(lambda h: h.kind == 'mfma' and h.dst & (vsrc | vdst), 8)
            chk(lambda h: h.kind == 'mfma' and h.srcC & vdst, 3)
            chk(lambda h: h.kind == 'valu' and {r for r in h.dst if r[0] == 's'} & ssrc, 5)
            chk(lambda h: h.kind == 'valu' and h.op.startswith(TRANS) and h.dst & vsrc, 1)
            if vdst: chk(lambda h: h.kind == 'vstore' and ('x4' in h.op or 'x3' in h.op) and h.src & vdst, 1)
        if I.kind == 'dma':
            chk(lambda h: h.kind == 'salu' and ('s', 124) in h.dst, 1)
        if I.kind in ('salu', 'smem'):
            chk(lambda h: h.kind == 'valu' and {r for r in h.dst if r[0] == 's'} & ssrc, 4)
        if I.kind == 'sctl' and I.op.startswith('s_cbranch_vcc'):
            chk(lambda h: h.kind == 'valu' and (('s', 106) in h.dst), 1)
        return need
    def _put(self, I):
        need = self._hazard_need(I)
        def push(x):
            self.hist.append(x)
            for h in self.alts: h.append(x)
        if need > 0:
            self.out.append(f's_nop {need - 1}'); push(need); self.n_nops += 1
        self.out.append(I.text)
        if I.op == 's_nop': push(int(I.text.split()[1]) + 1)
        else: push(I)
        if len(self.hist) > 40: self.hist = self.hist[-30:]
        self.alts = [h for h in self.alts if len(h) < 60]
        self.n_ins += 1
    def __call__(self, text, tag=None):
        for line in text.split('\n'):
            line = line.strip()
            if not line: continue
            if line.startswith(';'): self.out.append(line); continue
            if line.endswith(':'): self.label(line[:-1]); continue
            I = Ins(line, tag)
            if I.kind == 'sctl' and I.op == 's_waitcnt':
                m = re.search(r'vmcnt\((\d+)\)', line); m2 = re.search(r'lgkmcnt\((\d+)\)', line)
                self._wait(vm=int(m.group(1)) if m else None, lg=int(m2.group(1)) if m2 else None); continue
            touched = {r for r in (I.src | I.dst | I.srcC)}
            if tag == 'T': touched = set(I.src) - set(I.dst)
            self._need(touched)
            if self.smem_pending and I.kind != 'smem':
                pass
            self._put(I)
            if I.kind in ('vload', 'vstore', 'dma'):
                self.vmq.append((set(I.dst), tag)); self.nvm += 1; self.maxvm = max(self.maxvm, len(self.vmq))
            elif I.kind in ('dsread', 'dswrite'):
                self.lgq.append((set(I.dst), tag)); self.nlg += 1; self.maxlg = max(getattr(self, 'maxlg', 0), len(self.lgq))
            elif I.kind == 'smem':
                self.smem_pending = True
    def text(self): return '\n'.join(self.out) + '\n'
```

```python
import sys, os, math, struct
sys.path.insert(0, os.path.dirname(os.path.abspath(__file__)))
from asmlib import Asm

NAME = 'interleave_layers__sliding_local_dilated__dense_activation_mish__prompt'
KNAME = NAME + '_kernel'
def f2u(x): return struct.unpack('<I', struct.pack('<f', x))[0]
LOG2E = 1.4426950408889634
LN2 = 0.6931471805599453
OPT = dict(x.split('=') for x in os.environ.get('OPT', '').split(',') if x)
def opt(k, d): return type(d)(OPT.get(k, d))

XSTRIDE = 0x400000
FLAGS = 0x0; HFLAG = 0x400
XB = 0x10000; STB = 0x50000
HSET = 0x60000; HSZ = 0x8000; HSTAT = 0x4000
ACT = 0x100000
DELTA = 2*HSZ
TS = 0x3C0000
LDS_BYTES = 163840
B1 = 0; B2 = 98304; B2X = 90112; B3 = 0
B4HI = 114688; B4HS = 8192
B4LS = 28672
KVX = 57344; HPX = KVX + 6144; STS = HPX + 12288
CR = 159744
S_WS, S_WQ, S_WO, S_W1, S_W2, S_MISC, S_RM, S_DBG = 8, 12, 16, 20, 24, 28, 32, 36
sXCC, sSLOT, sWAVE, sGRP, sC, sRB, sCB, sIT = 40, 41, 42, 43, 44, 45, 46, 47
sT0, sT1, sT2, sT3, sT4, sT5 = 48, 49, 50, 51, 52, 53
sPH = 54
sB1S, sB1M, sB2S, sB2M, sB3S, sB3M, sB4S, sB4H, sB4L = 55, 56, 57, 58, 59, 60, 61, 62, 63
KA = 64
sXO = 84; sFLG = 85; sSPIN = 86; sTMPA = 87; sTMPB = 88; sONES = 89; sC1 = 90; sC2 = 91
sTSB = 92; sFIRST = 93; sEPS = 94; sTA = 96; sQ = 100; sHLP = 101; sRE = 3
def srd(b): return f's[{b}:{b+3}]'
vLANE, vL16, vZERO, vPOLL, vSTO, vOUT = 0, 1, 2, 3, 4, 5
vR1 = 6; vR2 = 8; vR3 = 12
vCSQ = 14; vCSK = 22; vCSV = 30
vMC = 32; vMP = 36; vMF = 40
vRP = 44; vPAT = 52
ACC = 56; WF = 120; XW = 152; TMP = 232
hD1, hD2, hD3 = 6, 7, 8
hT = 16
hDUM = 24
def v(n, k=1): return f'v{n}' if k == 1 else f'v[{n}:{n+k-1}]'
XMOD = os.environ.get('XMOD', ' sc1')

class Gen:
    def __init__(self, ts=False):
        self.a = Asm(); self.ts = ts; self.nts = 0; self.uid = 0; self.names = []; self.hnames = []; self.nhts = 0
        self.bars = {'c': [], 'h': []}; self.who = 'c'
    def lab(self, p): self.uid += 1; return f'L_{p}_{self.uid}'
    def stamp(self, name):
        if not self.ts: return
        a = self.a; r = TMP+23 if self.who == 'c' else 19
        n = self.nts if self.who == 'c' else self.nhts
        saved_lg = list(a.lgq)
        a.wait_lg(0)
        a(f's_memtime s[{sTA}:{sTA+1}]')
        a('s_waitcnt lgkmcnt(0)'); a.smem_pending = False
        a(f'v_mov_b32 v{r}, s{sTA}')
        a(f's_add_u32 s{sTMPB}, s{sTSB}, {4*n}')
        a(f's_cmp_lg_u32 s{sIT}, 0'); a(f's_cselect_b32 s95, 128, 0'); a(f's_add_u32 s{sTMPB}, s{sTMPB}, s95')
        a('s_mov_b64 exec, 1')
        a(f'buffer_store_dword v{r}, v{vZERO}, {srd(S_WS)}, s{sTMPB} offen')
        a('s_mov_b64 exec, -1')
        if self.who == 'c': self.names.append(name); self.nts += 1
        else: self.hnames.append(name); self.nhts += 1
    def fstamp(self, phase, i):
        if self.ts and opt('fs', '') == phase:
            r = [4, 6, 56, 58, 60][i]
            self.a.raw(f's_memtime s[{r}:{r+1}]')
    def fstamp_store(self, phase, n):
        if self.ts and opt('fs', '') == phase:
            a = self.a
            a('s_waitcnt lgkmcnt(0)')
            for i in range(n):
                r = [4, 6, 56, 58, 60][i]
                a(f'v_mov_b32 v{TMP+23}, s{r}')
                a(f's_add_u32 s{sTMPB}, s{sTSB}, {4*(24+i)}')
                a(f's_cmp_lg_u32 s{sIT}, 0'); a(f's_cselect_b32 s95, 128, 0'); a(f's_add_u32 s{sTMPB}, s{sTMPB}, s95')
                a('s_mov_b64 exec, 1')
                a(f'buffer_store_dword v{TMP+23}, v{vZERO}, {srd(S_WS)}, s{sTMPB} offen')
                a('s_mov_b64 exec, -1')
    def barrier(self, name, drain=True):
        if drain: self.a.wait_lg(0)
        self.a('s_barrier'); self.bars[self.who].append(name)
    def poll(self, target_sgpr, cachemod='sc1', srdb=S_WS, keep_lg=False):
        a = self.a; L = self.lab('poll'); Lo = self.lab('pollok')
        if keep_lg: a.wait_vm(0)
        else: a.wait_all()
        a(f's_mov_b32 s{sSPIN}, 0')
        a.label(L)
        a(f'buffer_load_dword v{TMP}, v{vPOLL}, {srd(srdb)}, 0 offen {cachemod}')
        a('s_waitcnt vmcnt(0)')
        a(f'v_cmp_gt_u32 vcc, s{target_sgpr}, v{TMP}')
        a(f's_cbranch_vccz {Lo}')
        a(f's_add_u32 s{sSPIN}, s{sSPIN}, 1')
        a(f's_cmp_lt_u32 s{sSPIN}, 0x40000')
        a(f's_cbranch_scc1 {L}')
        a(f'v_mov_b32 v{TMP}, 0xdead')
        a(f's_movk_i32 s{sSPIN}, 252')
        a(f'buffer_store_dword v{TMP}, v{vZERO}, {srd(S_DBG)}, s{sSPIN} offen sc1')
        a('s_waitcnt vmcnt(0)')
        a.label(Lo)
        a.forget()
    def set_flag(self, val_sgpr):
        a = self.a
        a.wait_vm(0)
        a(f'v_mov_b32 v{TMP}, s{val_sgpr}')
        a('s_mov_b64 exec, 1')
        a(f'buffer_store_dword v{TMP}, v{vZERO}, {srd(S_WS)}, s{sFLG} offen')
        a('s_mov_b64 exec, -1')
    def dma(self, voff, srdb, soff_base, soff_imm, m0_base, m0_imm, tag):
        a = self.a
        a(f's_add_u32 m0, s{m0_base}, {m0_imm}')
        a(f's_add_u32 s{sTMPA}, s{soff_base}, {soff_imm}')
        a(f'buffer_load_dwordx4 v{voff}, {srd(srdb)}, s{sTMPA} offen lds', tag=tag)
        if getattr(self, 'ilv', 0): self.tq(self.ilv)
    def emit(self, x):
        if isinstance(x, tuple): self.a(x[0], tag=x[1])
        else: self.a(x)
    def emit_all(self, L):
        for x in L: self.emit(x)
    def dma_B1(self):
        for ds in range(4):
            for mat in range(3):
                for h in range(2):
                    self.dma(hD1, S_WQ, sB1S, (32*ds + 16*h)*3072 + mat*1024, sB1M, ds*6144 + mat*2048 + h*1024, 'B1')
    def dma_B2(self, s0, s1):
        for s in range(s0, s1):
            self.dma(hD2, S_WO, sB2S, 32*s*1024, sB2M, (B2 + s*4096) if s < 15 else B2X, 'B2')
    def dma_B3(self, part):
        for ds in range(2):
            s = 8*part + ds
            for j in range(7):
                self.dma(hD3 + j, S_W1, sB3S, s*32*3584, sB3M, s*7168 + j*1024, 'B3')
    @staticmethod
    def w2_rowbase(n, h):
        P, i = divmod(n, 7)
        if i < 3: return 224*P + 32*i + 16*h
        if i < 6: return 224*P + 112 + 32*(i-3) + 16*h
        return 224*P + (96 if h == 0 else 208)
    @staticmethod
    def b4_slot(n):
        s = n if n < 9 else n - 9
        return ('H', s*4096) if s < 2 else ('L', (s-2)*4096)
    def dma_B4(self, n):
        part, off = self.b4_slot(n)
        for h in range(2):
            for i in range(2):
                self.dma(hD2, S_W2, sB4S, (self.w2_rowbase(n, h) + 8*i)*1024, sB4H if part == 'H' else sB4L, off + h*2048 + i*1024, f'B4_{n}')
    def touch(self, srdb, base_sgpr_mul, base_imm, nlines, extra_sgpr=None):
        a = self.a
        a(f's_mul_i32 s{sTMPA}, s{sQ}, {base_sgpr_mul}')
        if base_imm: a(f's_add_u32 s{sTMPA}, s{sTMPA}, {base_imm}')
        if extra_sgpr is not None: a(f's_add_u32 s{sTMPA}, s{sTMPA}, s{extra_sgpr}')
        if nlines < 64:
            a(f'v_min_u32 v{hT+1}, {nlines-1}, v{vLANE}'); a(f'v_lshlrev_b32 v{hT+1}, 7, v{hT+1}'); r = hT+1
        else: r = hT
        self.tk = (getattr(self, 'tk', 0) + 1) % 4
        a(f'buffer_load_dword v{hDUM+self.tk}, v{r}, {srd(srdb)}, s{sTMPA} offen', tag='T')
    def touch_wqkv(self): self.touch(S_WQ, 12288, 0, 64); self.touch(S_WQ, 12288, 8192, 32)
    def touch_wo(self): self.touch(S_WO, 4096, 0, 32)
    def touch_w1(self, half): self.touch(S_W1, 7168, half*256*3584, 56)
    def touch_w2(self, half):
        a = self.a
        a(f's_lshr_b32 s{sT0}, s{sQ}, 5'); a(f's_mul_i32 s{sT0}, s{sT0}, {448*1024}')
        a(f's_and_b32 s{sT1}, s{sQ}, 31'); a(f's_mul_i32 s{sT1}, s{sT1}, {7*1024}'); a(f's_add_u32 s{sT0}, s{sT0}, s{sT1}')
        a(f's_add_u32 s{sTMPA}, s{sT0}, {half*224*1024}')
        a(f'v_min_u32 v{hT+1}, 55, v{vLANE}'); a(f'v_lshlrev_b32 v{hT+1}, 7, v{hT+1}')
        self.tk = (getattr(self, 'tk', 0) + 1) % 4
        a(f'buffer_load_dword v{hDUM+self.tk}, v{hT+1}, {srd(S_W2)}, s{sTMPA} offen', tag='T')
    def reduce_pair_sum(self, x, y, u):
        a = self.a
        a(f'v_permlane32_swap_b32 v{x}, v{y}'); a(f'v_add_f32 v{x}, v{x}, v{y}')
        a(f'v_mov_b32 v{u}, v{x}'); a(f'v_permlane16_swap_b32 v{u}, v{x}'); a(f'v_add_f32 v{x}, v{x}, v{u}')
        a(f'v_mov_b32 v{y}, v{x}'); a(f'v_permlane32_swap_b32 v{x}, v{y}')
    def stats_finalize(self, q, rstd, mr):
        a = self.a
        a(f'v_add_f32 v{q}, v{q}, v{q+2}'); a(f'v_add_f32 v{q+1}, v{q+1}, v{q+3}')
        self.reduce_pair_sum(q, q+1, q+2)
        a(f'v_mul_f32 v{q}, {f2u(1/512.):#x}, v{q}'); a(f'v_mul_f32 v{q+1}, {f2u(1/512.):#x}, v{q+1}')
        a(f'v_fma_f32 v{q+1}, -v{q}, v{q}, v{q+1}'); a(f'v_max_f32 v{q+1}, 0, v{q+1}'); a(f'v_add_f32 v{q+1}, s{sEPS}, v{q+1}')
        a(f'v_rsq_f32 v{rstd}, v{q+1}'); a(f'v_mul_f32 v{mr}, v{q}, v{rstd}')
    def role(self):
        a = self.a; r = TMP if self.who == 'c' else 18
        L = self.lab('role'); Lo = self.lab('roleok')
        a.wait_lg(0)
        a(f'v_mov_b32 v{r+1}, {CR+2048}')
        a(f's_mov_b32 s{sSPIN}, 0')
        a.label(L)
        a(f'ds_read_b32 v{r}, v{r+1}')
        a('s_waitcnt lgkmcnt(0)')
        a(f'v_readfirstlane_b32 s{sSLOT}, v{r}')
        a(f's_cmp_lg_u32 s{sSLOT}, 0'); a(f's_cbranch_scc1 {Lo}')
        a(f's_add_u32 s{sSPIN}, s{sSPIN}, 1'); a(f's_cmp_lt_u32 s{sSPIN}, 0x100000'); a(f's_cbranch_scc1 {L}')
        a.label(Lo)
        a(f's_sub_u32 s{sSLOT}, s{sSLOT}, 1')
        self.role_scalars()
    def role_scalars(self):
        a = self.a
        a(f's_and_b32 s{sSLOT}, s{sSLOT}, 31')
        a(f's_lshr_b32 s{sGRP}, s{sSLOT}, 4'); a(f's_and_b32 s{sC}, s{sSLOT}, 15')
        a(f's_lshr_b32 s{sT0}, s{sC}, 3'); a(f's_lshl_b32 s{sRB}, s{sGRP}, 1'); a(f's_add_u32 s{sRB}, s{sRB}, s{sT0}')
        a(f's_and_b32 s{sCB}, s{sC}, 7')
        a(f's_mov_b32 s{sIT}, 0'); a(f's_mov_b32 s{sPH}, 0'); a(f's_mov_b32 s{sRE}, 0')
        a(f's_lshl_b32 s{sFLG}, s{sSLOT}, 4'); a(f's_lshl_b32 s{sT0}, s{sWAVE}, 2'); a(f's_add_u32 s{sFLG}, s{sFLG}, s{sT0}')
        if self.ts:
            a(f's_lshl_b32 s{sTSB}, s{sFLG}, 6'); a(f's_add_u32 s{sTSB}, s{sTSB}, {TS + (0 if self.who == "c" else 0x8000):#x}')
            r = TMP+23 if self.who == 'c' else 19
            a(f'v_mov_b32 v{r}, s98'); a('s_mov_b64 exec, 1')
            a(f'buffer_store_dword v{r}, v{vZERO}, {srd(S_WS)}, s{sTSB} offen'); a('s_mov_b64 exec, -1')
            if self.who == 'c': self.names = ['start']; self.nts = 1
            else: self.hnames = ['start']; self.nhts = 1
    def prologue(self):
        a = self.a
        a(f's_cmp_ge_u32 s2, 256')
        a(f's_cbranch_scc1 L_end')
        if self.ts: a('s_memtime s[98:99]')
        a(f's_load_dwordx16 s[{KA}:{KA+15}], s[0:1], 0')
        a(f's_load_dwordx4 s[{KA+16}:{KA+19}], s[0:1], 64')
        a(f's_getreg_b32 s{sXCC}, hwreg(HW_REG_XCC_ID, 0, 4)')
        a(f'v_lshrrev_b32 v1, 6, v0')
        a(f'v_and_b32 v{vLANE}, 63, v0')
        a(f'v_readfirstlane_b32 s{sWAVE}, v1')
        a(f's_and_b32 s{sXCC}, s{sXCC}, 7')
        a(f'v_lshlrev_b32 v{vL16}, 4, v{vLANE}')
        a(f'v_mov_b32 v{vZERO}, 0')
        a(f's_lshr_b32 s{sHLP}, s{sWAVE}, 2'); a(f's_and_b32 s{sWAVE}, s{sWAVE}, 3')
        a(f'v_mov_b32 v3, {CR+2048}')
        a(f'ds_write_b32 v3, v{vZERO}')
        a('s_waitcnt lgkmcnt(0)')
        a('s_barrier')
        P = lambda i: KA + 2*i
        def mk(b, p, n):
            a(f's_mov_b32 s{b}, s{P(p)}'); a(f's_and_b32 s{b+1}, s{P(p)+1}, 0xffff'); a(f's_mov_b32 s{b+2}, {n:#x}'); a(f's_mov_b32 s{b+3}, 0x20000')
        mk(S_DBG, 8, 256)
        Ls = self.lab('noatom')
        a(f's_or_b32 s{sT0}, s{sHLP}, s{sWAVE}'); a(f's_cmp_lg_u32 s{sT0}, 0')
        snap = a.cond_skip(f's_cbranch_scc1 {Ls}')
        a(f's_and_b32 s{sT0}, s{sXCC}, 3'); a(f's_lshl_b32 s{sT0}, s{sT0}, 6'); a(f's_lshr_b32 s{sT1}, s{sXCC}, 2'); a(f's_lshl_b32 s{sT1}, s{sT1}, 2')
        a(f's_add_u32 s{sT0}, s{sT0}, s{sT1}')
        a(f's_add_u32 s{sT2}, s{P(8)}, s{sT0}'); a(f's_addc_u32 s{sT3}, s{P(8)+1}, 0')
        a(f's_mov_b32 s{sT4}, 1')
        a(f's_atomic_add s{sT4}, s[{sT2}:{sT3}], 0 glc')
        a('s_waitcnt lgkmcnt(0)')
        a(f's_add_u32 s{sT4}, s{sT4}, 1')
        a(f'v_mov_b32 v{TMP}, s{sT4}'); a(f'v_mov_b32 v{TMP+1}, {CR+2048}')
        a(f'ds_write_b32 v{TMP+1}, v{TMP}')
        a('s_waitcnt lgkmcnt(0)')
        a.cond_join(Ls, snap)
        mk(S_WQ, 1, 512*1536*2); mk(S_WO, 2, 512*512*2); mk(S_W1, 4, 512*1792*2); mk(S_W2, 6, 1792*512*2)
        mk(S_MISC, 0, 2048*512*2)
        a(f's_mul_i32 s{sT0}, s{sXCC}, {XSTRIDE:#x}')
        a(f's_add_u32 s{S_WS}, s{P(9)}, s{sT0}'); a(f's_addc_u32 s{S_WS+1}, s{P(9)+1}, 0'); a(f's_and_b32 s{S_WS+1}, s{S_WS+1}, 0xffff')
        a(f's_mov_b32 s{S_WS+2}, {XSTRIDE:#x}'); a(f's_mov_b32 s{S_WS+3}, 0x20000')
        a(f's_add_u32 s{sT0}, s{sT0}, {XSTRIDE:#x}')
        a(f's_add_u32 s{S_RM}, s{P(9)}, s{sT0}'); a(f's_addc_u32 s{S_RM+1}, s{P(9)+1}, 0'); a(f's_and_b32 s{S_RM+1}, s{S_RM+1}, 0xffff')
        a(f's_mov_b32 s{S_RM+2}, {XSTRIDE:#x}'); a(f's_mov_b32 s{S_RM+3}, 0x20000')
        a(f's_cmp_lg_u32 s{sHLP}, 0'); a('s_cbranch_scc1 L_helper')
        self.hsnap = a.snapshot()
        a('s_setprio 2')
        self.role()
        a(f's_mov_b32 s{sONES}, 0x3f803f80'); a(f's_mov_b32 s{sEPS}, {f2u(1e-5):#x}')
        self.stamp('role')
    def lane_consts(self):
        a = self.a; T = XW
        p, g, pr, pc = T+1, T+2, T+3, T+4
        a(f'v_and_b32 v{p}, 15, v{vLANE}'); a(f'v_lshrrev_b32 v{g}, 4, v{vLANE}')
        a(f'v_lshrrev_b32 v{pr}, 2, v{p}'); a(f'v_and_b32 v{pc}, 3, v{p}')
        r = T+5
        a(f'v_lshlrev_b32 v{r}, 2, v{g}'); a(f'v_add_u32 v{r}, v{r}, v{pr}')
        c8 = T+6
        a(f'v_lshlrev_b32 v{c8}, 3, v{pc}')
        t0, t1 = T+7, T+8
        a(f'v_and_b32 v{t1}, 1, v{g}'); a(f'v_lshlrev_b32 v{t1}, 5, v{t1}')
        a(f'v_lshlrev_b32 v{t0}, 6, v{r}'); a(f'v_add_u32 v{t0}, v{t0}, v{c8}')
        a(f'v_add_u32 v{vR1}, v{t0}, v{t1}'); a(f'v_xor_b32 v{vR1+1}, 32, v{vR1}')
        a(f'v_lshrrev_b32 v{t1}, 3, v{p}'); a(f'v_lshlrev_b32 v{T+9}, 1, v{g}'); a(f'v_add_u32 v{t1}, v{t1}, v{T+9}')
        a(f'v_and_b32 v{t1}, 3, v{t1}'); a(f'v_lshlrev_b32 v{t1}, 5, v{t1}')
        a(f'v_lshlrev_b32 v{t0}, 7, v{r}'); a(f'v_add_u32 v{t0}, v{t0}, v{c8}')
        for ct in range(4):
            a(f'v_xor_b32 v{T+9}, {ct*32}, v{t1}'); a(f'v_add_u32 v{vPAT+ct}, v{T+9}, v{t0}')
            a(f'v_add_u32 v{vR2+ct}, {B2}, v{vPAT+ct}')
        a(f'v_mul_u32_u24 v{t0}, 224, v{r}'); a(f'v_add_u32 v{vR3}, v{t0}, v{c8}')
        a(f's_mul_i32 s{sB4L}, s{sWAVE}, {B4LS}'); a(f's_mul_i32 s{sB4H}, s{sWAVE}, {B4HS}'); a(f's_add_u32 s{sB4H}, s{sB4H}, {B4HI}')
        a(f's_lshr_b32 s{sT0}, s{sCB}, 1'); a(f's_lshl_b32 s{sT0}, s{sT0}, 8'); a(f's_and_b32 s{sT1}, s{sCB}, 1'); a(f's_lshl_b32 s{sT1}, s{sT1}, 3')
        a(f's_add_u32 s{sT0}, s{sT0}, s{sT1}')
        a(f'v_lshlrev_b32 v{t0}, 4, v{p}'); a(f'v_lshrrev_b32 v{t1}, 5, v{vLANE}'); a(f'v_lshlrev_b32 v{t1}, 2, v{t1}')
        a(f'v_add_u32 v{t0}, v{t0}, v{t1}'); a(f'v_add_u32 v{vSTO}, s{sT0}, v{t0}')
        a(f'v_and_b32 v{t1}, 1, v{g}'); a(f'v_mul_u32_u24 v{t1}, 24, v{t1}')
        a(f'v_lshlrev_b32 v{t0}, 3, v{g}'); a(f'v_add_u32 v{t0}, v{t0}, v{t1}')
        a(f'v_lshlrev_b32 v{t1}, 10, v{p}'); a(f'v_add_u32 v{t0}, v{t0}, v{t1}')
        a(f's_lshl_b32 s{sT0}, s{sCB}, 7'); a(f'v_add_u32 v{vOUT}, s{sT0}, v{t0}')
        NEG = f2u(-1e30)
        a(f's_mov_b32 s{sT2}, {NEG:#x}'); a(f'v_mov_b32 v{T+10}, s{sT2}')
        a(f's_or_b32 s{sT0}, s{sXCC}, s{sGRP}'); a(f's_or_b32 s{sFIRST}, s{sT0}, s{sWAVE}')
        for r_ in range(4):
            a(f'v_lshlrev_b32 v{t0}, 2, v{g}'); a(f'v_add_u32 v{t0}, {r_}, v{t0}')
            a(f'v_sub_u32 v{t1}, v{p}, v{t0}')
            a(f'v_and_b32 v{T+9}, 1, v{t1}')
            a(f'v_cmp_eq_u32 s[{sT4}:{sT4+1}], 0, v{T+9}')
            a(f'v_cmp_le_i32 vcc, 0, v{t1}')
            a(f's_and_b64 vcc, vcc, s[{sT4}:{sT4+1}]')
            a(f'v_cndmask_b32 v{vMC+r_}, v{T+10}, v{vZERO}, vcc')
            a(f'v_cmp_ge_i32 vcc, -2, v{t1}')
            a(f's_and_b64 vcc, vcc, s[{sT4}:{sT4+1}]')
            a(f'v_cndmask_b32 v{vMP+r_}, v{T+10}, v{vZERO}, vcc')
            a(f's_cmp_eq_u32 s{sFIRST}, 0')
            a(f's_cselect_b64 vcc, 0, vcc')
            a(f'v_cndmask_b32 v{vMF+r_}, v{T+10}, v{vZERO}, vcc')
    def phase0_load(self):
        a = self.a; T = XW + 16
        R = [T+4, T+8, T+12]
        a(f's_lshl_b32 s{sT0}, s{sXCC}, 8'); a(f's_lshl_b32 s{sT1}, s{sSLOT}, 3'); a(f's_add_u32 s{sT0}, s{sT0}, s{sT1}')
        a(f's_lshl_b32 s{sT1}, s{sWAVE}, 1'); a(f's_add_u32 s{sT0}, s{sT0}, s{sT1}'); a(f's_lshl_b32 s{sT0}, s{sT0}, 10')
        a(f'buffer_load_dwordx4 {v(R[0],4)}, v{vL16}, {srd(S_MISC)}, s{sT0} offen')
        a(f'buffer_load_dwordx4 {v(R[1],4)}, v{vL16}, {srd(S_MISC)}, s{sT0} offen offset:1024')
        a(f's_lshl_b32 s{sT1}, s{sXCC}, 8'); a(f's_lshl_b32 s{sT2}, s{sSLOT}, 2'); a(f's_add_u32 s{sT1}, s{sT1}, s{sT2}'); a(f's_add_u32 s{sT1}, s{sT1}, s{sWAVE}')
        a(f's_sub_u32 s{sT1}, s{sT1}, 16'); a(f's_lshl_b32 s{sT1}, s{sT1}, 10')
        a(f's_cmp_eq_u32 s{sXCC}, 0'); a(f's_cselect_b32 s{sT1}, 0x7ff00000, s{sT1}')
        a(f'buffer_load_dwordx4 {v(R[2],4)}, v{vL16}, {srd(S_MISC)}, s{sT1} offen')
        a(f's_lshl_b32 s{sT2}, s{sXCC}, 2'); a(f's_add_u32 s{sT2}, s{sT2}, 32'); a(f'v_mov_b32 v{vPOLL}, s{sT2}')
        a(f'buffer_load_dword v{T+3}, v{vPOLL}, {srd(S_DBG)}, 0 offen sc1')
    def phase0(self):
        a = self.a; T = XW + 16
        R = [T+4, T+8, T+12]
        a.wait_vm(0)
        self.stamp('p0_loaded')
        S1 = [T+16, T+18, T+20]
        for i in range(3):
            r = R[i]; s1 = S1[i]; s2 = s1 + 1
            a(f'v_dot2_f32_bf16 v{s1}, v{r}, s{sONES}, 0'); a(f'v_dot2_f32_bf16 v{s2}, v{r}, v{r}, 0')
            for k in range(1, 4):
                a(f'v_dot2_f32_bf16 v{s1}, v{r+k}, s{sONES}, v{s1}'); a(f'v_dot2_f32_bf16 v{s2}, v{r+k}, v{r+k}, v{s2}')
        U = [T+22, T+23, T+24]
        for i in range(3): a(f'v_permlane32_swap_b32 v{S1[i]}, v{S1[i]+1}')
        for i in range(3): a(f'v_add_f32 v{S1[i]}, v{S1[i]}, v{S1[i]+1}')
        for i in range(3): a(f'v_mov_b32 v{U[i]}, v{S1[i]}')
        for i in range(3): a(f'v_permlane16_swap_b32 v{U[i]}, v{S1[i]}')
        for i in range(3): a(f'v_add_f32 v{S1[i]}, v{S1[i]}, v{U[i]}')
        for sh in (8, 4, 2, 1):
            for i in range(3): a(f'v_add_f32_dpp v{S1[i]}, v{S1[i]}, v{S1[i]} row_ror:{sh} row_mask:0xf bank_mask:0xf')
        XA = T+25; SA = T+26
        a(f'v_lshrrev_b32 v{XA}, 2, v{vLANE}'); a(f'v_lshlrev_b32 v{XA}, 10, v{XA}')
        a(f'v_and_b32 v{SA}, 1, v{vLANE}'); a(f'v_lshlrev_b32 v{SA}, 9, v{SA}'); a(f'v_add_u32 v{XA}, v{XA}, v{SA}')
        a(f'v_and_b32 v{SA}, 2, v{vLANE}'); a(f'v_lshlrev_b32 v{SA}, 2, v{SA}'); a(f'v_add_u32 v{XA}, v{XA}, v{SA}')
        a(f'v_lshlrev_b32 v{SA}, 8, v{vLANE}')
        a(f's_lshr_b32 s{sT0}, s{sSLOT}, 1'); a(f's_and_b32 s{sT1}, s{sSLOT}, 1'); a(f's_lshl_b32 s{sT1}, s{sT1}, 3')
        a(f's_lshl_b32 s{sT2}, s{sWAVE}, 1'); a(f's_add_u32 s{sT1}, s{sT1}, s{sT2}'); a(f's_lshl_b32 s{sT1}, s{sT1}, 4')
        a(f's_lshl_b32 s{sT2}, s{sT0}, 14'); a(f's_add_u32 s{sT2}, s{sT2}, s{sT1}'); a(f's_add_u32 s{sT2}, s{sT2}, {XB:#x}')
        a(f's_lshl_b32 s{sT3}, s{sT0}, 10'); a(f's_add_u32 s{sT3}, s{sT3}, s{sT1}'); a(f's_add_u32 s{sT3}, s{sT3}, {STB:#x}')
        Q = T+28
        def put(i, sx, ss, off, mod=''):
            r = R[i]
            a(f'buffer_store_dwordx2 {v(r,2)}, v{XA}, {srd(S_WS)}, s{sx} offen offset:{off}{mod}', tag='st')
            a(f'buffer_store_dwordx2 {v(r+2,2)}, v{XA}, {srd(S_WS)}, s{sx} offen offset:{off+256}{mod}', tag='st')
            a(f'v_readlane_b32 s{sT4}, v{S1[i]}, 0'); a(f'v_readlane_b32 s{sT5}, v{S1[i]}, 32')
            for k in range(4): a(f'v_mov_b32 v{Q+k}, 0')
            a(f'v_writelane_b32 v{Q}, s{sT4}, 0'); a(f'v_writelane_b32 v{Q+1}, s{sT5}, 0')
            a('s_mov_b64 exec, 0xf')
            a(f'buffer_store_dwordx4 {v(Q,4)}, v{SA}, {srd(S_WS)}, s{ss} offen offset:{off}{mod}', tag='st')
            a('s_mov_b64 exec, -1')
        put(0, sT2, sT3, 0); put(1, sT2, sT3, 16)
        Lh = self.lab('nohalo')
        a(f's_cmp_ge_u32 s{sSLOT}, 4'); snap = a.cond_skip(f's_cbranch_scc1 {Lh}')
        a(f's_lshl_b32 s{sT0}, s{sSLOT}, 2'); a(f's_add_u32 s{sT0}, s{sT0}, s{sWAVE}'); a(f's_lshl_b32 s{sT0}, s{sT0}, 4')
        a(f's_add_u32 s{sT2}, s{sT0}, {HSET:#x}'); a(f's_add_u32 s{sT3}, s{sT0}, {HSET+HSTAT:#x}')
        put(2, sT2, sT3, 0, ' sc1')
        a('s_waitcnt vmcnt(0)')
        a.cond_join(Lh, snap)
        Lh2 = self.lab('nohalo1')
        a(f's_lshr_b32 s{sT0}, s{sSLOT}, 1'); a(f's_cmp_lg_u32 s{sT0}, 7'); snap = a.cond_skip(f's_cbranch_scc1 {Lh2}')
        a(f's_add_u32 s{sT2}, s{sT1}, {HSET+HSZ:#x}'); a(f's_add_u32 s{sT3}, s{sT1}, {HSET+HSZ+HSTAT:#x}')
        put(0, sT2, sT3, 0, ' sc1'); put(1, sT2, sT3, 16, ' sc1')
        a('s_waitcnt vmcnt(0)')
        a.cond_join(Lh2, snap)
        Lr = self.lab('rdy')
        a(f'v_cmp_eq_u32 vcc, 0, v{T+3}'); snap = a.cond_skip(f's_cbranch_vccz {Lr}')
        a(f's_mov_b32 s{sT3}, 1')
        self.poll(sT3, srdb=S_DBG)
        a.cond_join(Lr, (snap[0], snap[1], snap[2], a.nvm, a.nlg))
        a(f's_mov_b32 s{sT0}, 1')
        self.set_flag(sT0)
        self.stamp('p0_done')
        P7 = KA + 14
        a(f's_mov_b32 s{S_MISC}, s{P7}'); a(f's_and_b32 s{S_MISC+1}, s{P7+1}, 0xffff'); a(f's_mov_b32 s{S_MISC+2}, {2048*512*2}'); a(f's_mov_b32 s{S_MISC+3}, 0x20000')
    def poll_addr_x_phase0(self):
        a = self.a; T = TMP
        a(f's_lshl_b32 s{sT0}, s{sGRP}, 3'); a(f's_lshl_b32 s{sT1}, s{sWAVE}, 1'); a(f's_add_u32 s{sT0}, s{sT0}, s{sT1}'); a(f's_lshl_b32 s{sT0}, s{sT0}, 3')
        a(f's_cmp_eq_u32 s{sGRP}, 0'); a(f's_cselect_b32 s{sT1}, 0, 56'); a(f's_cselect_b32 s{sT2}, 15, 7')
        a(f'v_and_b32 v{T+1}, 15, v{vLANE}'); a(f'v_add_u32 v{T+1}, s{sT0}, v{T+1}')
        a(f'v_and_b32 v{T+2}, s{sT2}, v{vLANE}'); a(f'v_add_u32 v{T+2}, s{sT1}, v{T+2}')
        a(f'v_cmp_gt_u32 vcc, 32, v{vLANE}')
        a(f'v_cndmask_b32 v{T+1}, v{T+2}, v{T+1}, vcc')
        a(f'v_lshlrev_b32 v{vPOLL}, 2, v{T+1}')
    def poll_addr_tiles_from_cbs(self, with_halo):
        a = self.a; T = TMP
        a(f's_lshl_b32 s{sT0}, s{sGRP}, 3'); a(f's_lshl_b32 s{sT1}, s{sWAVE}, 1'); a(f's_add_u32 s{sT0}, s{sT0}, s{sT1}')
        a(f's_lshr_b32 s{sT1}, s{sT0}, 2'); a(f's_lshl_b32 s{sT1}, s{sT1}, 3')
        a(f's_and_b32 s{sT0}, s{sT0}, 3')
        a(f's_lshl_b32 s{sT1}, s{sT1}, 2'); a(f's_add_u32 s{sT0}, s{sT0}, s{sT1}')
        a(f'v_and_b32 v{T+1}, 7, v{vLANE}'); a(f'v_lshlrev_b32 v{T+1}, 2, v{T+1}')
        a(f'v_bfe_u32 v{T+2}, v{vLANE}, 3, 1'); a(f'v_add_u32 v{T+1}, v{T+1}, v{T+2}'); a(f'v_add_u32 v{T+1}, s{sT0}, v{T+1}')
        if with_halo:
            a(f'v_and_b32 v{T+2}, 7, v{vLANE}'); a(f'v_lshlrev_b32 v{T+2}, 2, v{T+2}'); a(f'v_add_u32 v{T+2}, 35, v{T+2}')
            a(f'v_cmp_gt_u32 vcc, 32, v{vLANE}')
            a(f's_cmp_eq_u32 s{sGRP}, 0'); a(f's_cselect_b64 vcc, -1, vcc')
            a(f'v_cndmask_b32 v{T+1}, v{T+2}, v{T+1}, vcc')
        a(f'v_lshlrev_b32 v{vPOLL}, 2, v{T+1}')
    def stream(self, mf, reads_after, fillers, pre_waits, hooks={}):
        a = self.a; fill = {}
        for gap, ins in fillers: fill.setdefault(gap, []).append(ins)
        for i, m in enumerate(mf):
            if i in hooks: hooks[i]()
            if i in pre_waits: a.wait_regs(pre_waits[i])
            a(m)
            for r in reads_after.get(i, []): self.emit(r)
            for f in fill.get(i, []): self.emit(f)
        assert not [g for g in fill if g >= len(mf)]
    @staticmethod
    def spread(L, g0, g1):
        n = len(L); span = g1 - g0
        return [(g0 + (i * span) // n, x) for i, x in enumerate(L)]
    @staticmethod
    def xplan(nsteps, nslots, init, per_step):
        nxt = init; plan = {}
        for s in range(nsteps):
            L = []
            while nxt < nsteps and nxt <= s + nslots - 1 and len(L) < per_step(s):
                L.append(nxt); nxt += 1
            plan[s] = L
        assert nxt == nsteps
        return list(range(init)), plan
    def p1(self):
        a = self.a; T = TMP
        NS = 10; XH = 16
        sX0, sX1, sH, sS = sT0, sT1, sT2, sXO+0
        Lp2 = self.lab('p1l3'); Lpj = self.lab('p1j')
        a(f's_cmp_lg_u32 s{sIT}, 0'); a(f's_cbranch_scc1 {Lp2}')
        self.poll_addr_x_phase0(); a(f's_mov_b32 s{sT3}, 1')
        a(f's_branch {Lpj}')
        a.label(Lp2)
        self.poll_addr_tiles_from_cbs(True); a(f's_mov_b32 s{sT3}, 5')
        a.label(Lpj)
        sHS = sC2
        a(f's_lshl_b32 s{sT4}, s{sGRP}, 3'); a(f's_lshl_b32 s{sT5}, s{sWAVE}, 1'); a(f's_add_u32 s{sT4}, s{sT4}, s{sT5}')
        a(f's_lshl_b32 s{sX0}, s{sT4}, 14'); a(f's_add_u32 s{sX0}, s{sX0}, {XB:#x}'); a(f's_add_u32 s{sX1}, s{sX0}, 16384')
        a(f's_lshl_b32 s{sS}, s{sT4}, 10'); a(f's_add_u32 s{sS}, s{sS}, {STB:#x}')
        a(f's_mul_i32 s{sH}, s{sGRP}, {HSZ:#x}'); a(f's_add_u32 s{sH}, s{sH}, s{sIT}'); a(f's_add_u32 s{sH}, s{sH}, {HSET:#x}'); a(f's_add_u32 s{sHS}, s{sH}, {HSTAT:#x}')
        a(f's_or_b32 s{sT5}, s{sXCC}, s{sGRP}'); a(f's_cmp_eq_u32 s{sT5}, 0')
        a(f's_cselect_b32 s{sT5}, s{sIT}, 0'); a(f's_cmp_lg_u32 s{sT5}, 0')
        a(f's_cselect_b32 s{sH}, 0x7ff00000, s{sH}'); a(f's_cselect_b32 s{sHS}, 0x7ff00000, s{sHS}')
        a(f's_lshl_b32 s{sT5}, s{sWAVE}, 12'); a(f's_add_u32 s{sH}, s{sH}, s{sT5}')
        SQ = [T+4, T+8, T+12]
        R1H = T+16
        a(f'v_add_u32 v{R1H}, {8*6144}, v{vR1}'); a(f'v_add_u32 v{R1H+1}, {8*6144}, v{vR1+1}')
        self.poll(sT3)
        self.stamp('p1_ready')
        def xload(s):
            L = []
            if s % 4 == 0 and s > 0:
                L += [f's_add_u32 s{sX0}, s{sX0}, 4096', f's_add_u32 s{sX1}, s{sX1}, 4096']
            b = XW + 8*(s % NS)
            L += [f'buffer_load_dwordx4 {v(b,4)}, v{vL16}, {srd(S_WS)}, s{sX0} offen offset:{(s%4)*1024}{XMOD}',
                  f'buffer_load_dwordx4 {v(b+4,4)}, v{vL16}, {srd(S_WS)}, s{sX1} offen offset:{(s%4)*1024}{XMOD}']
            return L
        init, plan = self.xplan(16, NS, 3, lambda s: 1 + (s & 1))
        for s in init: self.emit_all(xload(s))
        self.barrier('bB1', drain=False)
        def wread(s, f):
            mat, hh = f >> 1, f & 1
            base = (R1H if s >= 8 else vR1) + hh; so = (s % 8)*6144 + mat*2048
            return [f'ds_read_b64_tr_b16 {v(WF+4*f+2*h,2)}, v{base} offset:{so+h*1024}' for h in range(2)]
        for f in range(6): self.emit_all(wread(0, f))
        mf = []; ra = {}; pw = {}; fl = []
        for s in range(16):
            xb = XW + 8*(s % NS)
            for f in range(6):
                for t in range(2):
                    acc = v(ACC+8*f+4*t, 4); X = v(xb+4*t, 4); W = v(WF+4*f, 4); C = acc if s else '0'
                    mf.append(f'v_mfma_f32_16x16x32_bf16 {acc}, {W}, {X}, {C}' if f < 4 else f'v_mfma_f32_16x16x32_bf16 {acc}, {X}, {W}, {C}')
                if s < 15:
                    r0, r1 = wread(s+1, f)
                    ra.setdefault(len(mf)-1, []).append(r0); ra.setdefault(len(mf), []).append(r1)
            g0 = 12*s
            x = []
            for n in plan[s]: x += xload(n)
            if x: fl += self.spread(x, g0+1, g0+11)
        st = [f'buffer_load_dwordx4 {v(SQ[0],4)}, v{vL16}, {srd(S_WS)}, s{sS} offen{XMOD}',
              f'buffer_load_dwordx4 {v(SQ[1],4)}, v{vL16}, {srd(S_WS)}, s{sS} offen offset:1024{XMOD}']
        last = max(s for s in plan if plan[s]); fl += self.spread(st, 12*(last+1)+1, 12*(last+1)+8); HE = last + 2
        def hl():
            for i in range(4): a(f'buffer_load_dwordx4 {v(XH+4*i,4)}, v{vL16}, {srd(S_WS)}, s{sH} offen offset:{i*1024} sc1')
            a(f'buffer_load_dwordx4 {v(SQ[2],4)}, v{vL16}, {srd(S_WS)}, s{sHS} offen sc1')
        def halo():
            Lr = self.lab('norem')
            a(f's_cmp_eq_u32 s{sIT}, 0'); snap = a.cond_skip(f's_cbranch_scc1 {Lr}')
            a(f's_cmp_lg_u32 s{sGRP}, 0'); a(f's_cbranch_scc1 {Lr}')
            a(f's_cmp_eq_u32 s{sXCC}, 0'); a(f's_cbranch_scc1 {Lr}')
            a(f'v_and_b32 v{vPOLL}, 7, v{vLANE}'); a(f'v_lshlrev_b32 v{vPOLL}, 2, v{vPOLL}'); a(f'v_add_u32 v{vPOLL}, {HFLAG}, v{vPOLL}')
            a(f's_mov_b32 s{sT3}, 1')
            lg = list(a.lgq)
            self.poll(sT3, keep_lg=True)
            a.lgq = lg
            a.cond_join(Lr, (snap[0], snap[1], snap[2], a.nvm, a.nlg))
            hl()
            self.barrier('bX1', drain=False)
        hk = {12*HE: halo}
        f0 = opt('f0', -1)
        for gi, fi in (((1, 0), (48, 1), (95, 2), (144, 3), (191, 4)) if f0 < 0 else tuple((12*(f0+k)+1, k) for k in range(5))):
            hk[gi] = (lambda fi=fi: self.fstamp('p1', fi))
        self.stream(mf, ra, fl, pw, hooks=hk)
        HA = T+18
        a(f's_mul_i32 s{sT4}, s{sWAVE}, {4*6144}')
        a(f'v_add_u32 v{HA}, s{sT4}, v{vR1}'); a(f'v_add_u32 v{HA+1}, s{sT4}, v{vR1+1}')
        def hread(i, pc, dst):
            mat, hh = 1 + (pc >> 1), pc & 1
            return [f'ds_read_b64_tr_b16 {v(dst+2*h,2)}, v{HA+hh} offset:{i*6144+mat*2048+h*1024}' for h in range(2)]
        for i in range(2):
            for pc in range(4): self.emit_all(hread(i, pc, WF + 16*i + 4*pc))
        for i in range(4):
            b = WF + 16*(i & 1)
            for pc in range(4):
                acc = v(ACC+48+4*pc, 4); X = v(XH+4*i, 4); W = v(b+4*pc, 4); C = acc if i else '0'
                a(f'v_mfma_f32_16x16x32_bf16 {acc}, {W}, {X}, {C}' if pc < 2 else f'v_mfma_f32_16x16x32_bf16 {acc}, {X}, {W}, {C}')
                if i + 2 < 4: self.emit_all(hread(i+2, pc, b+4*pc))
        self.stamp('p1_main'); self.fstamp_store('p1', 5)
        E = XW
        RS = [E+2, E+4, E+6]
        for t in range(3): self.stats_finalize(SQ[t], RS[t], RS[t]+1)
        self.barrier('b2')
        a(f'v_lshrrev_b32 v{E+60}, 4, v{vLANE}'); a(f'v_lshlrev_b32 v{E+60}, 4, v{E+60}'); a(f'v_add_u32 v{E+60}, {CR+1024}, v{E+60}')
        a(f'v_and_b32 v{E+61}, 15, v{vLANE}'); a(f'v_lshlrev_b32 v{E+61}, 2, v{E+61}'); a(f'v_add_u32 v{E+61}, {CR+1024+256}, v{E+61}')
        for hh in range(2):
            a(f'ds_read_b128 {v(vCSK+4*hh,4)}, v{E+60} offset:{128+hh*64}')
            a(f'ds_read_b32 v{vCSV+hh}, v{E+61} offset:{hh*64}')
            a(f'ds_read_b128 {v(vCSQ+4*hh,4)}, v{E+60} offset:{hh*64}')
        SA = E+8
        a(f'v_and_b32 v{SA}, 15, v{vLANE}'); a(f'v_lshlrev_b32 v{SA}, 2, v{SA}')
        a(f'v_bfe_u32 v{SA+1}, v{vLANE}, 4, 1'); a(f'v_lshlrev_b32 v{SA+1}, 6, v{SA+1}'); a(f'v_add_u32 v{SA}, v{SA}, v{SA+1}')
        a(f's_lshl_b32 s{sT4}, s{sWAVE}, 8'); a(f's_add_u32 s{sT4}, s{sT4}, {STS}'); a(f'v_add_u32 v{SA}, s{sT4}, v{SA}')
        a(f'v_and_b32 v{SA+1}, 16, v{vLANE}'); a(f'v_cmp_eq_u32 vcc, 0, v{SA+1}')
        for t in range(2):
            a(f'v_cndmask_b32 v{SA+2}, v{RS[t]+1}, v{RS[t]}, vcc')
            a(f'ds_write_b32 v{SA}, v{SA+2} offset:{t*128}')
        a(f'v_cndmask_b32 v{SA+2}, v{RS[2]+1}, v{RS[2]}, vcc')
        a(f'v_subrev_u32 v{SA+3}, s{sT4}, v{SA}'); a(f'v_add_u32 v{SA+3}, {STS+1024}, v{SA+3}')
        a(f'ds_write_b32 v{SA+3}, v{SA+2}')
        RA = E+9
        a(f'v_lshrrev_b32 v{RA}, 4, v{vLANE}'); a(f'v_lshlrev_b32 v{RA}, 4, v{RA}'); a(f'v_add_u32 v{RA}, s{sT4}, v{RA}')
        VS = WF
        for t in range(2):
            a(f'ds_read_b128 {v(VS+8*t,4)}, v{RA} offset:{t*128}'); a(f'ds_read_b128 {v(VS+8*t+4,4)}, v{RA} offset:{t*128+64}')
        QF = WF+16; KS = E+10; U = WF+24
        k = 0
        def norm_T(accb, cs, t, dst):
            rs = RS[t]
            for pz in range(2):
                u = U + 2*pz + 4*(k & 1)
                a(f'v_pk_mul_f32 {v(u,2)}, {v(cs+2*pz,2)}, {v(rs,2)} op_sel:[0,1] op_sel_hi:[1,1]')
            for pz in range(2):
                u = U + 2*pz + 4*(k & 1)
                a(f'v_pk_fma_f32 {v(u,2)}, {v(accb+2*pz,2)}, {v(rs,2)}, {v(u,2)} op_sel_hi:[1,0,1] neg_lo:[0,0,1] neg_hi:[0,0,1]')
            for pz in range(2):
                u = U + 2*pz + 4*(k & 1)
                a(f'v_cvt_pk_bf16_f32 v{dst+pz}, v{u}, v{u+1}')
        for h in range(2):
            for t in range(2):
                norm_T(ACC+8*(2+h)+4*t, vCSK+4*h, t, KS+6*h+2+2*t); k += 1
        VQ = E+24
        for h in range(2):
            for t in range(2):
                accb = ACC+8*(4+h)+4*t
                for pz in range(2):
                    u = U + 2*pz + 4*(k & 1)
                    a(f'v_pk_mul_f32 {v(u,2)}, {v(VS+8*t+4+2*pz,2)}, {v(vCSV,2)} op_sel:[0,{h}] op_sel_hi:[1,{h}]')
                for pz in range(2):
                    u = U + 2*pz + 4*(k & 1)
                    a(f'v_pk_fma_f32 {v(u,2)}, {v(accb+2*pz,2)}, {v(VS+8*t+2*pz,2)}, {v(u,2)} neg_lo:[0,0,1] neg_hi:[0,0,1]')
                for pz in range(2):
                    u = U + 2*pz + 4*(k & 1)
                    a(f'v_cvt_pk_bf16_f32 v{VQ+6*h+2+2*t+pz}, v{u}, v{u+1}')
                k += 1
        EA = E+8
        a(f's_lshl_b32 s{sT4}, s{sWAVE}, 11'); a(f's_add_u32 s{sT4}, s{sT4}, {KVX}')
        a(f'v_lshlrev_b32 v{EA}, 3, v{vLANE}'); a(f'v_add_u32 v{EA}, s{sT4}, v{EA}')
        Lw3 = self.lab('w3')
        a(f's_cmp_eq_u32 s{sWAVE}, 3'); snap = a.cond_skip(f's_cbranch_scc1 {Lw3}')
        for h in range(2):
            a(f'ds_write_b64 v{EA}, {v(KS+6*h+4,2)} offset:{h*512}'); a(f'ds_write_b64 v{EA}, {v(VQ+6*h+4,2)} offset:{1024+h*512}')
        a.cond_join(Lw3, snap)
        Lw0 = self.lab('w0')
        a(f's_cmp_eq_u32 s{sWAVE}, 0'); snap = a.cond_skip(f's_cbranch_scc1 {Lw0}')
        a(f's_lshl_b32 s{sT4}, s{sWAVE}, 12'); a(f's_add_u32 s{sT4}, s{sT4}, {HPX-4096}'); a(f'v_add_u32 v{EA+1}, s{sT4}, v{vL16}')
        for pc in range(4): a(f'ds_write_b128 v{EA+1}, {v(ACC+48+4*pc,4)} offset:{pc*1024}')
        a.cond_join(Lw0, snap)
        for h in range(2):
            for t in range(2):
                norm_T(ACC+8*h+4*t, vCSQ+4*h, t, QF+4*h+2*t); k += 1
        self.barrier('b3')
        Lp = self.lab('prevx'); Lq = self.lab('prevj')
        a(f's_cmp_eq_u32 s{sWAVE}, 0'); a(f's_cbranch_scc1 {Lp}')
        a(f'v_subrev_u32 v{EA}, 2048, v{EA}')
        for h in range(2):
            a(f'ds_read_b64 {v(KS+6*h,2)}, v{EA} offset:{h*512}'); a(f'ds_read_b64 {v(VQ+6*h,2)}, v{EA} offset:{1024+h*512}')
        a.wait_lg(0)
        a(f's_branch {Lq}')
        a.label(Lp)
        HB = ACC+16
        a(f'v_add_u32 v{EA}, {HPX}, v{vL16}')
        for w in range(3):
            for pc in range(4): a(f'ds_read_b128 {v(HB+16*(w&1)+4*pc,4)}, v{EA} offset:{w*4096+pc*1024}')
            if w >= 1:
                for i in range(0, 16, 2): a(f'v_pk_add_f32 {v(ACC+48+i,2)}, {v(ACC+48+i,2)}, {v(HB+16*((w-1)&1)+i,2)}')
        for i in range(0, 16, 2): a(f'v_pk_add_f32 {v(ACC+48+i,2)}, {v(ACC+48+i,2)}, {v(HB+i,2)}')
        a(f'v_lshrrev_b32 v{EA+1}, 4, v{vLANE}'); a(f'v_lshlrev_b32 v{EA+1}, 4, v{EA+1}'); a(f'v_add_u32 v{EA+1}, {STS+1024}, v{EA+1}')
        a(f'ds_read_b128 {v(HB,4)}, v{EA+1}'); a(f'ds_read_b128 {v(HB+4,4)}, v{EA+1} offset:64')
        for h in range(2):
            norm_T(ACC+48+4*h, vCSK+4*h, 2, KS+6*h); k += 1
        for h in range(2):
            accb = ACC+56+4*h
            for pz in range(2):
                u = U + 2*pz
                a(f'v_pk_mul_f32 {v(u,2)}, {v(HB+4+2*pz,2)}, {v(vCSV,2)} op_sel:[0,{h}] op_sel_hi:[1,{h}]')
                a(f'v_pk_fma_f32 {v(u,2)}, {v(accb+2*pz,2)}, {v(HB+2*pz,2)}, {v(u,2)} neg_lo:[0,0,1] neg_hi:[0,0,1]')
                a(f'v_cvt_pk_bf16_f32 v{VQ+6*h+pz}, v{u}, v{u+1}')
        a.wait_lg(0)
        a('s_nop 1')
        a.label(Lq); a.forget()
        self.stamp('p1_exch')
        SB = ACC+16
        a(f's_mov_b32 s{sC1}, {f2u(0.25*LOG2E):#x}')
        for t in range(2):
            for h in range(2):
                b = SB+16*t+8*h; Q = v(QF+4*h+2*t, 2)
                a(f'v_mfma_f32_16x16x16_bf16 {v(b,4)}, {v(KS+6*h+2*t,2)}, {Q}, 0')
                a(f'v_mfma_f32_16x16x16_bf16 {v(b+4,4)}, {v(KS+6*h+2*t+2,2)}, {Q}, 0')
        MX = WF
        for t in range(2):
            mp = vMF if t == 0 else vMP
            for h in range(2):
                b = SB+16*t+8*h
                for pz in range(2):
                    a(f'v_pk_fma_f32 {v(b+2*pz,2)}, {v(b+2*pz,2)}, s[{sC1}:{sC1+1}], {v(mp+2*pz,2)} op_sel_hi:[1,0,1]')
                    a(f'v_pk_fma_f32 {v(b+4+2*pz,2)}, {v(b+4+2*pz,2)}, s[{sC1}:{sC1+1}], {v(vMC+2*pz,2)} op_sel_hi:[1,0,1]')
        for step in range(4):
            for t in range(2):
                for h in range(2):
                    b = SB+16*t+8*h; m = MX+2*t+h
                    if step == 0: a(f'v_max3_f32 v{m}, v{b}, v{b+1}, v{b+2}')
                    elif step == 1: a(f'v_max3_f32 v{m}, v{m}, v{b+3}, v{b+4}')
                    elif step == 2: a(f'v_max3_f32 v{m}, v{m}, v{b+5}, v{b+6}')
                    else: a(f'v_max_f32 v{m}, v{m}, v{b+7}')
        def red2(op, pairs):
            for x, y, u in pairs: a(f'v_permlane32_swap_b32 v{x}, v{y}')
            for x, y, u in pairs: a(f'{op} v{x}, v{x}, v{y}')
            for x, y, u in pairs: a(f'v_mov_b32 v{u}, v{x}')
            for x, y, u in pairs: a(f'v_permlane16_swap_b32 v{u}, v{x}')
            for x, y, u in pairs: a(f'{op} v{x}, v{x}, v{u}')
            for x, y, u in pairs: a(f'v_mov_b32 v{y}, v{x}')
            for x, y, u in pairs: a(f'v_permlane32_swap_b32 v{x}, v{y}')
        red2('v_max_f32', [(MX+2*t, MX+2*t+1, MX+4+t) for t in range(2)])
        SM = WF+8; PK = ACC+48
        for t in range(2):
            for h in range(2):
                b = SB+16*t+8*h; m = MX+2*t
                for pz in range(4):
                    a(f'v_pk_add_f32 {v(b+2*pz,2)}, {v(b+2*pz,2)}, {v(m,2)} op_sel:[0,{h}] op_sel_hi:[1,{h}] neg_lo:[0,1] neg_hi:[0,1]')
                for i in range(8): a(f'v_exp_f32 v{b+i}, v{b+i}')
        OB = E+40
        for t in range(2):
            for h in range(2):
                b = SB+16*t+8*h
                for pz in range(4): a(f'v_cvt_pk_bf16_f32 v{PK+8*t+4*h+pz}, v{b+2*pz}, v{b+2*pz+1}')
            for h in range(2):
                a(f'v_mfma_f32_16x16x32_bf16 {v(OB+8*t+4*h,4)}, {v(VQ+6*h+2*t,4)}, {v(PK+8*t+4*h,4)}, 0')
        for t in range(2):
            for h in range(2):
                b = SB+16*t+8*h; u = WF+12+2*h+8*t
                a(f'v_pk_add_f32 {v(u,2)}, {v(b,2)}, {v(b+2,2)}'); a(f'v_pk_add_f32 {v(u+4,2)}, {v(b+4,2)}, {v(b+6,2)}')
            for h in range(2):
                u = WF+12+2*h+8*t
                a(f'v_pk_add_f32 {v(u,2)}, {v(u,2)}, {v(u+4,2)}')
            for h in range(2):
                u = WF+12+2*h+8*t
                a(f'v_add_f32 v{SM+2*t+h}, v{u}, v{u+1}')
        red2('v_add_f32', [(SM+2*t, SM+2*t+1, MX+4+t) for t in range(2)])
        for i in range(4): a(f'v_rcp_f32 v{SM+i}, v{SM+i}')
        a(f's_lshl_b32 s{sT4}, s{sGRP}, 3'); a(f's_lshl_b32 s{sT5}, s{sWAVE}, 1'); a(f's_add_u32 s{sT4}, s{sT4}, s{sT5}')
        a(f's_mul_i32 s{sT4}, s{sT4}, 57344'); a(f's_lshl_b32 s{sT5}, s{sC}, 10'); a(f's_add_u32 s{sT4}, s{sT4}, s{sT5}')
        a(f's_add_u32 s{sT4}, s{sT4}, {ACT:#x}'); a(f's_add_u32 s{sT5}, s{sT4}, 57344')
        OP = E+56
        for t in range(2):
            for h in range(2):
                b = OB+8*t+4*h
                for pz in range(2):
                    a(f'v_pk_mul_f32 {v(b+2*pz,2)}, {v(b+2*pz,2)}, {v(SM+2*t,2)} op_sel:[0,{h}] op_sel_hi:[1,{h}]')
                for pz in range(2):
                    a(f'v_cvt_pk_bf16_f32 v{OP+4*t+2*h+pz}, v{b+2*pz}, v{b+2*pz+1}')
            a(f'buffer_store_dwordx4 {v(OP+4*t,4)}, v{vL16}, {srd(S_WS)}, s{sT4 if t == 0 else sT5} offen', tag='st')
        a(f's_add_u32 s{sT0}, s{sPH}, 2')
        self.set_flag(sT0)
        self.stamp('p1_done')
    def resid_add(self, accb):
        a = self.a; U = TMP+4
        for i0 in range(0, 8, 2):
            for i in (i0, i0+1):
                u = U + 2*(i & 1)
                a(f'v_lshlrev_b32 v{u}, 16, v{vRP+i}'); a(f'v_and_b32 v{u+1}, 0xffff0000, v{vRP+i}')
            for i in (i0, i0+1):
                u = U + 2*(i & 1)
                a(f'v_pk_add_f32 {v(u,2)}, {v(u,2)}, {v(accb+2*i,2)}')
            for i in (i0, i0+1):
                u = U + 2*(i & 1)
                a(f'v_cvt_pk_bf16_f32 v{vRP+i}, v{u}, v{u+1}')
        a(f's_lshl_b32 s{sT4}, s{sRB}, 2'); a(f's_add_u32 s{sT4}, s{sT4}, s{sWAVE}')
    def resid_store_xf(self):
        a = self.a; T = TMP
        S1, S2, U = T+8, T+9, T+10
        a(f's_lshl_b32 s{sT0}, s{sT4}, 14'); a(f's_lshl_b32 s{sT1}, s{sCB}, 11'); a(f's_add_u32 s{sT0}, s{sT0}, s{sT1}')
        a(f's_add_u32 s{sT0}, s{sT0}, {XB:#x}')
        a(f'buffer_store_dwordx4 {v(vRP,4)}, v{vL16}, {srd(S_WS)}, s{sT0} offen', tag='st')
        a(f'buffer_store_dwordx4 {v(vRP+4,4)}, v{vL16}, {srd(S_WS)}, s{sT0} offen offset:1024', tag='st')
        a(f'v_dot2_f32_bf16 v{S1}, v{vRP}, s{sONES}, 0'); a(f'v_dot2_f32_bf16 v{S2}, v{vRP}, v{vRP}, 0')
        for i in range(1, 8):
            a(f'v_dot2_f32_bf16 v{S1}, v{vRP+i}, s{sONES}, v{S1}'); a(f'v_dot2_f32_bf16 v{S2}, v{vRP+i}, v{vRP+i}, v{S2}')
        a(f'v_permlane32_swap_b32 v{S1}, v{S2}'); a(f'v_add_f32 v{S1}, v{S1}, v{S2}')
        a(f'v_mov_b32 v{U}, v{S1}'); a(f'v_permlane16_swap_b32 v{U}, v{S1}'); a(f'v_add_f32 v{S1}, v{S1}, v{U}')
        a(f's_lshl_b32 s{sT1}, s{sT4}, 10'); a(f's_add_u32 s{sT1}, s{sT1}, {STB:#x}')
        a(f'buffer_store_dword v{S1}, v{vSTO}, {srd(S_WS)}, s{sT1} offen', tag='st')
        return S1
    def p2(self):
        a = self.a; T = TMP
        a(f's_lshl_b32 s{sT0}, s{sRB}, 2'); a(f's_add_u32 s{sT0}, s{sT0}, s{sWAVE}')
        a(f's_and_b32 s{sT1}, s{sT0}, 7'); a(f's_lshr_b32 s{sT1}, s{sT1}, 1')
        a(f's_lshl_b32 s{sT2}, s{sGRP}, 6'); a(f's_add_u32 s{sT1}, s{sT1}, s{sT2}')
        a(f'v_and_b32 v{T+1}, 15, v{vLANE}'); a(f'v_lshlrev_b32 v{T+1}, 2, v{T+1}'); a(f'v_add_u32 v{T+1}, s{sT1}, v{T+1}')
        a(f'v_lshlrev_b32 v{vPOLL}, 2, v{T+1}')
        a(f's_add_u32 s{sT3}, s{sPH}, 2')
        R2X = T+12
        for ct in range(4): a(f'v_add_u32 v{R2X+ct}, {B2X}, v{vPAT+ct}')
        a(f's_lshl_b32 s{sT1}, s{sT0}, 14')
        a(f's_lshl_b32 s{sT2}, s{sCB}, 11'); a(f's_add_u32 s{sT2}, s{sT2}, s{sT1}'); a(f's_add_u32 s{sT2}, s{sT2}, {XB:#x}')
        a(f's_mul_i32 s{sT1}, s{sT0}, 57344'); a(f's_add_u32 s{sT1}, s{sT1}, {ACT:#x}')
        self.poll(sT3)
        self.stamp('p2_ready')
        sX = sT1
        def xl(s):
            L = [f's_add_u32 s{sX}, s{sX}, 4096'] if (s % 4 == 0 and s > 0) else []
            return L + [f'buffer_load_dwordx4 {v(XW+4*s,4)}, v{vL16}, {srd(S_WS)}, s{sX} offen offset:{(s%4)*1024}{XMOD}']
        for s in range(6): self.emit_all(xl(s))
        self.barrier('b4', drain=False)
        NB = 7
        def rd(n):
            s_, ct = divmod(n, 4); b = WF + 4*(n % 8)
            if s_ < 15: return [f'ds_read_b64_tr_b16 {v(b+2*h,2)}, v{vR2+ct} offset:{s_*4096+h*2048}' for h in range(2)]
            return [f'ds_read_b64_tr_b16 {v(b+2*h,2)}, v{R2X+ct} offset:{h*2048}' for h in range(2)]
        for n in range(NB): self.emit_all(rd(n))
        rest = []
        for s in range(6, 16): rest.append(xl(s))
        rest.append([f'buffer_load_dwordx4 {v(vRP,4)}, v{vL16}, {srd(S_WS)}, s{sT2} offen{XMOD}'])
        rest.append([f'buffer_load_dwordx4 {v(vRP+4,4)}, v{vL16}, {srd(S_WS)}, s{sT2} offen offset:1024{XMOD}'])
        for n in range(64):
            s, ct = divmod(n, 4)
            a(f'v_mfma_f32_16x16x32_bf16 {v(ACC+4*ct,4)}, {v(WF+4*(n%8),4)}, {v(XW+4*s,4)}, {v(ACC+4*ct,4) if s else 0}')
            if n + NB < 64: self.emit_all(rd(n+NB))
            if rest and n % 2 == 1:
                self.emit_all(rest.pop(0))
                if not rest: self.barrier('bX2', drain=False)
        self.stamp('p2_main')
        self.barrier('b5')
        self.resid_add(ACC)
        self.resid_store_xf()
        a(f's_add_u32 s{sT0}, s{sPH}, 3')
        self.set_flag(sT0)
        self.stamp('p2_done')
    def p3(self):
        a = self.a; T = TMP
        NS = 10
        self.poll_addr_tiles_from_cbs(False); a(f's_add_u32 s{sT3}, s{sPH}, 3')
        R3H = T+12
        a(f'v_add_u32 v{R3H}, {9*7168}, v{vR3}')
        sX0, sX1, sS = sT0, sT1, sT2
        a(f's_lshl_b32 s{sT4}, s{sGRP}, 3'); a(f's_lshl_b32 s{sT5}, s{sWAVE}, 1'); a(f's_add_u32 s{sT4}, s{sT4}, s{sT5}')
        a(f's_lshl_b32 s{sX0}, s{sT4}, 14'); a(f's_add_u32 s{sX0}, s{sX0}, {XB:#x}'); a(f's_add_u32 s{sX1}, s{sX0}, 16384')
        a(f's_lshl_b32 s{sS}, s{sT4}, 10'); a(f's_add_u32 s{sS}, s{sS}, {STB:#x}')
        self.poll(sT3)
        self.stamp('p3_ready')
        SQ = [T+4, T+8]
        def xload(s):
            L = []
            if s % 4 == 0 and s > 0:
                L += [f's_add_u32 s{sX0}, s{sX0}, 4096', f's_add_u32 s{sX1}, s{sX1}, 4096']
            b = XW + 8*(s % NS)
            L += [f'buffer_load_dwordx4 {v(b,4)}, v{vL16}, {srd(S_WS)}, s{sX0} offen offset:{(s%4)*1024}{XMOD}',
                  f'buffer_load_dwordx4 {v(b+4,4)}, v{vL16}, {srd(S_WS)}, s{sX1} offen offset:{(s%4)*1024}{XMOD}']
            return L
        init, plan = self.xplan(16, NS, 3, lambda s: 1 + (s & 1))
        for s in init: self.emit_all(xload(s))
        self.barrier('b6', drain=False)
        def wread(s, ct):
            base = vR3 if s < 9 else R3H; so = (s if s < 9 else s - 9)*7168 + ct*32
            return [f'ds_read_b64_tr_b16 {v(WF+4*ct+2*h,2)}, v{base} offset:{so+h*3584}' for h in range(2)]
        for ct in range(7): self.emit_all(wread(0, ct))
        mf = []; ra = {}; pw = {}; fl = []
        for s in range(16):
            xb = XW + 8*(s % NS)
            for ct in range(7):
                for t in range(2):
                    acc = v(ACC+8*ct+4*t, 4)
                    mf.append(f'v_mfma_f32_16x16x32_bf16 {acc}, {v(WF+4*ct,4)}, {v(xb+4*t,4)}, {acc if s else 0}')
                if s < 15:
                    r0, r1 = wread(s+1, ct)
                    ra.setdefault(len(mf)-1, []).append(r0); ra.setdefault(len(mf), []).append(r1)
            g0 = 14*s
            x = []
            for n in plan[s]: x += xload(n)
            if x: fl += self.spread(x, g0+1, g0+13)
        st = [f'buffer_load_dwordx4 {v(SQ[0],4)}, v{vL16}, {srd(S_WS)}, s{sS} offen{XMOD}',
              f'buffer_load_dwordx4 {v(SQ[1],4)}, v{vL16}, {srd(S_WS)}, s{sS} offen offset:1024{XMOD}']
        last = max(s for s in plan if plan[s]); fl += self.spread(st, 14*(last+1)+1, 14*(last+1)+10)
        self.stream(mf, ra, fl, pw, hooks={1: lambda: self.fstamp('p3', 0), 56: lambda: self.fstamp('p3', 1), 111: lambda: self.fstamp('p3', 2), 14*(last+2): lambda: self.barrier('bX3', drain=False), 168: lambda: self.fstamp('p3', 3), 223: lambda: self.fstamp('p3', 4)})
        self.stamp('p3_main'); self.fstamp_store('p3', 5)
        RS = [T+16, T+18]
        for t in range(2): self.stats_finalize(SQ[t], RS[t], RS[t]+1)
        a(f's_mov_b32 s{sC1}, {f2u(LOG2E):#x}')
        for t in range(2):
            a(f'v_mul_f32 v{RS[t]}, s{sC1}, v{RS[t]}'); a(f'v_mul_f32 v{RS[t]+1}, s{sC1}, v{RS[t]+1}')
        self.barrier('b7')
        CA = T+13
        a(f'v_lshrrev_b32 v{CA}, 4, v{vLANE}'); a(f'v_lshlrev_b32 v{CA}, 4, v{CA}'); a(f'v_add_u32 v{CA}, {CR}, v{CA}')
        CB_ = WF
        def crd(ct):
            a(f'ds_read_b128 {v(CB_+8*(ct&1),4)}, v{CA} offset:{ct*64}'); a(f'ds_read_b128 {v(CB_+8*(ct&1)+4,4)}, v{CA} offset:{512+ct*64}')
        crd(0); crd(1)
        a(f's_lshl_b32 s{sT4}, s{sGRP}, 3'); a(f's_lshl_b32 s{sT5}, s{sWAVE}, 1'); a(f's_add_u32 s{sT4}, s{sT4}, s{sT5}')
        a(f's_mul_i32 s{sT4}, s{sT4}, 57344'); a(f's_add_u32 s{sT4}, s{sT4}, {ACT:#x}')
        a(f's_lshr_b32 s{sT5}, s{sC}, 1'); a(f's_mul_i32 s{sT5}, s{sT5}, 7168'); a(f's_add_u32 s{sT4}, s{sT4}, s{sT5}')
        a(f's_and_b32 s{sT5}, s{sC}, 1')
        a(f's_mul_i32 s{sT0}, s{sT5}, 3072'); a(f's_add_u32 s{sT0}, s{sT0}, s{sT4}')
        a(f's_lshl_b32 s{sT1}, s{sT5}, 3'); a(f's_add_u32 s{sT1}, s{sT1}, s{sT4}'); a(f's_add_u32 s{sT1}, s{sT1}, 6144')
        a(f's_add_u32 s{sT2}, s{sT0}, 57344'); a(f's_add_u32 s{sT3}, s{sT1}, 57344')
        a(f's_mov_b32 s{sC1}, {f2u(-2*LN2):#x}'); a(f's_mov_b32 s{sC2}, {f2u(LN2):#x}')
        LNV = T+20
        a(f'v_mov_b32 v{LNV}, s{sC2}'); a(f'v_mov_b32 v{LNV+1}, s{sC2}')
        OUTQ = lambda t, par: XW + 8*par + 4*t
        SC = XW + 16
        for ct in range(7):
            cs = CB_ + 8*(ct & 1); bc = cs + 4
            U4 = [(t, pz) for t in range(2) for pz in range(2)]
            y = {u: SC + 2*i for i, u in enumerate(U4)}; e = {u: SC + 8 + 2*i for i, u in enumerate(U4)}; d = {u: SC + 16 + 2*i for i, u in enumerate(U4)}
            for (t, pz) in U4:
                a(f'v_pk_fma_f32 {v(y[t,pz],2)}, {v(cs+2*pz,2)}, {v(RS[t],2)}, {v(bc+2*pz,2)} op_sel:[0,1,0] op_sel_hi:[1,1,1] neg_lo:[0,1,0] neg_hi:[0,1,0]')
            if ct + 2 < 7: crd(ct+2)
            for (t, pz) in U4:
                a(f'v_pk_fma_f32 {v(y[t,pz],2)}, {v(ACC+8*ct+4*t+2*pz,2)}, {v(RS[t],2)}, {v(y[t,pz],2)} op_sel_hi:[1,0,1]')
            for u in U4:
                a(f'v_exp_f32 v{e[u]}, v{y[u]}'); a(f'v_exp_f32 v{e[u]+1}, v{y[u]+1}')
            for u in U4: a(f'v_pk_add_f32 {v(d[u],2)}, {v(e[u],2)}, 2.0 op_sel_hi:[1,0]')
            for u in U4: a(f'v_pk_fma_f32 {v(d[u],2)}, {v(e[u],2)}, {v(d[u],2)}, 2.0 op_sel_hi:[1,1,0]')
            for u in U4:
                a(f'v_rcp_f32 v{d[u]}, v{d[u]}'); a(f'v_rcp_f32 v{d[u]+1}, v{d[u]+1}')
            for u in U4: a(f'v_pk_fma_f32 {v(d[u],2)}, {v(d[u],2)}, s[{sC1}:{sC1+1}], {v(LNV,2)} op_sel_hi:[1,0,1]')
            for u in U4: a(f'v_pk_mul_f32 {v(y[u],2)}, {v(y[u],2)}, {v(d[u],2)}')
            par = (ct >> 1) & 1
            for (t, pz) in U4: a(f'v_cvt_pk_bf16_f32 v{OUTQ(t,par)+2*(ct&1)+pz}, v{y[t,pz]}, v{y[t,pz]+1}')
            if ct & 1:
                for t in range(2):
                    a(f'buffer_store_dwordx4 {v(OUTQ(t,par),4)}, v{vL16}, {srd(S_WS)}, s{sT0 if t == 0 else sT2} offen offset:{(ct>>1)*1024}', tag='st')
            if ct == 6:
                for t in range(2):
                    a(f'buffer_store_dwordx2 {v(OUTQ(t,par),2)}, v{vL16}, {srd(S_WS)}, s{sT1 if t == 0 else sT3} offen', tag='st')
        a(f's_add_u32 s{sT0}, s{sPH}, 4')
        self.set_flag(sT0)
        self.stamp('p3_done')
    def p4(self):
        a = self.a; T = TMP
        NS = 5
        a(f's_lshl_b32 s{sT0}, s{sGRP}, 4'); a(f's_lshl_b32 s{sT1}, s{sWAVE}, 2'); a(f's_add_u32 s{sT0}, s{sT0}, s{sT1}'); a(f's_lshl_b32 s{sT0}, s{sT0}, 2')
        a(f's_and_b32 s{sT1}, s{sRB}, 1'); a(f's_lshl_b32 s{sT1}, s{sT1}, 1'); a(f's_add_u32 s{sT0}, s{sT0}, s{sT1}')
        a(f'v_and_b32 v{T+1}, 3, v{vLANE}'); a(f'v_lshlrev_b32 v{T+1}, 2, v{T+1}'); a(f'v_bfe_u32 v{T+2}, v{vLANE}, 2, 1')
        a(f'v_add_u32 v{T+1}, v{T+1}, v{T+2}'); a(f'v_add_u32 v{T+1}, s{sT0}, v{T+1}'); a(f'v_lshlrev_b32 v{vPOLL}, 2, v{T+1}')
        sX = [sT0, sT1, sT2, sT3]
        for tl in range(4):
            a(f's_add_u32 s{sT4}, s{sWAVE}, {tl}'); a(f's_and_b32 s{sT4}, s{sT4}, 3'); a(f's_lshl_b32 s{sT5}, s{sRB}, 2'); a(f's_add_u32 s{sT4}, s{sT4}, s{sT5}')
            a(f's_mul_i32 s{sT4}, s{sT4}, 57344'); a(f's_mul_i32 s{sT5}, s{sWAVE}, {14*1024}'); a(f's_add_u32 s{sT4}, s{sT4}, s{sT5}')
            a(f's_add_u32 s{sX[tl]}, s{sT4}, {ACT:#x}')
        R4H, R4L = T+4, T+8
        for ct in range(4):
            a(f'v_add_u32 v{R4H+ct}, s{sB4H}, v{vPAT+ct}'); a(f'v_add_u32 v{R4L+ct}, s{sB4L}, v{vPAT+ct}')
        a(f's_add_u32 s{sXO}, s{sPH}, 4')
        self.poll(sXO)
        self.stamp('p4_ready')
        def xload(n):
            L = []
            if n % 4 == 0 and n > 0: L += [f's_add_u32 s{sX[tl]}, s{sX[tl]}, 4096' for tl in range(4)]
            L += [f'buffer_load_dwordx4 {v(XW+16*(n%NS)+4*tl,4)}, v{vL16}, {srd(S_WS)}, s{sX[tl]} offen offset:{(n%4)*1024}{XMOD}' for tl in range(4)]
            return L
        init, plan = self.xplan(14, NS, 2, lambda s: 2 if s < 2 else 1)
        for n in init: self.emit_all(xload(n))
        self.barrier('bB4', drain=False)
        def wread(n, ct):
            part, off = self.b4_slot(n); base = (R4H if part == 'H' else R4L) + ct
            return [f'ds_read_b64_tr_b16 {v(WF+16*(n&1)+4*ct+2*h,2)}, v{base} offset:{off+h*2048}' for h in range(2)]
        for ct in range(4): self.emit_all(wread(0, ct))
        for n in range(14):
            if n in (1, 4, 7, 10, 13): self.fstamp('p4', (1, 4, 7, 10, 13).index(n))
            if n == 8: self.barrier('B1p', drain=False)
            if n == 10: self.barrier('B2p', drain=False)
            seq = []
            if n + 1 < 14:
                for ct in range(4): seq += wread(n+1, ct)
            xl = []
            for m in plan[n]: xl += xload(m)
            merged = []
            i = j = 0
            while i < len(seq) or j < len(xl):
                if i < len(seq): merged.append(seq[i]); i += 1
                if j < len(xl): merged.append(xl[j]); j += 1
            m = 0
            for ct in range(4):
                for tl in range(4):
                    acc = v(ACC+16*tl+4*ct, 4)
                    a(f'v_mfma_f32_16x16x32_bf16 {acc}, {v(WF+16*(n&1)+4*ct,4)}, {v(XW+16*(n%NS)+4*tl,4)}, {acc if n else 0}')
                    m += 1
                    k = 2 if len(merged) > (16 - m) else 1
                    for _ in range(k):
                        if merged: self.emit(merged.pop(0))
            assert not merged
            if n == 1: self.barrier('A1', drain=False)
            if n == 4: self.barrier('A2', drain=False)
        self.stamp('p4_main'); self.fstamp_store('p4', 5)
        RA = T+12
        a(f'v_add_u32 v{RA}, s{sB4L}, v{vL16}')
        for tl in range(1, 4):
            for ct in range(4): a(f'ds_write_b128 v{RA}, {v(ACC+16*tl+4*ct,4)} offset:{(tl-1)*4096+ct*1024}')
        for tl in range(1, 4):
            a(f's_sub_u32 s{sT4}, s{sWAVE}, {tl}'); a(f's_and_b32 s{sT4}, s{sT4}, 3'); a(f's_mul_i32 s{sT4}, s{sT4}, {B4LS}')
            a(f'v_add_u32 v{RA+tl}, s{sT4}, v{vL16}')
        self.barrier('b9')
        for tl in range(1, 4):
            for ct in range(4): a(f'ds_read_b128 {v(ACC+16*tl+4*ct,4)}, v{RA+tl} offset:{(tl-1)*4096+ct*1024}')
        for tl in range(1, 4):
            for i in range(0, 16, 2): a(f'v_pk_add_f32 {v(ACC+i,2)}, {v(ACC+i,2)}, {v(ACC+16*tl+i,2)}')
        self.barrier('b10')
        self.stamp('p4_red')
        Lf = self.lab('final')
        a(f's_cmp_lg_u32 s{sIT}, 0'); a(f's_cbranch_scc1 {Lf}')
        self.resid_add(ACC)
        S1 = self.resid_store_xf()
        Lnh = self.lab('nohalo2')
        a(f's_cmp_lg_u32 s{sWAVE}, 3'); snap = a.cond_skip(f's_cbranch_scc1 {Lnh}')
        a(f's_cmp_lg_u32 s{sRB}, 1'); a(f's_cbranch_scc1 {Lnh}')
        a(f's_lshl_b32 s{sT0}, s{sCB}, 11'); a(f's_add_u32 s{sT0}, s{sT0}, {HSET + 3*HSZ:#x}')
        a(f'buffer_store_dwordx4 {v(vRP,4)}, v{vL16}, {srd(S_WS)}, s{sT0} offen sc1')
        a(f'buffer_store_dwordx4 {v(vRP+4,4)}, v{vL16}, {srd(S_WS)}, s{sT0} offen offset:1024 sc1')
        a(f's_mov_b32 s{sT1}, {HSET + 3*HSZ + HSTAT:#x}')
        a(f'buffer_store_dword v{S1}, v{vSTO}, {srd(S_WS)}, s{sT1} offen sc1')
        a('s_waitcnt vmcnt(0)')
        a.cond_join(Lnh, snap)
        a(f's_mov_b32 s{sT0}, 5')
        self.set_flag(sT0)
        Lnr = self.lab('noremote')
        a(f's_cmp_lg_u32 s{sWAVE}, 3'); snap = a.cond_skip(f's_cbranch_scc1 {Lnr}')
        a(f's_cmp_lg_u32 s{sRB}, 3'); a(f's_cbranch_scc1 {Lnr}')
        a(f's_cmp_eq_u32 s{sXCC}, 7'); a(f's_cbranch_scc1 {Lnr}')
        a(f's_lshl_b32 s{sT0}, s{sCB}, 11'); a(f's_add_u32 s{sT0}, s{sT0}, {HSET + 2*HSZ:#x}')
        a(f'buffer_store_dwordx4 {v(vRP,4)}, v{vL16}, {srd(S_RM)}, s{sT0} offen sc1')
        a(f'buffer_store_dwordx4 {v(vRP+4,4)}, v{vL16}, {srd(S_RM)}, s{sT0} offen offset:1024 sc1')
        a(f's_mov_b32 s{sT1}, {HSET + 2*HSZ + HSTAT:#x}')
        a(f'buffer_store_dword v{S1}, v{vSTO}, {srd(S_RM)}, s{sT1} offen sc1')
        a(f's_add_u32 s{sT2}, s{sXCC}, 1'); a(f's_lshl_b32 s{sT2}, s{sT2}, 2'); a(f's_add_u32 s{sT2}, s{sT2}, 32'); a(f'v_mov_b32 v{vPOLL}, s{sT2}')
        a(f's_mov_b32 s{sT3}, 1')
        self.poll(sT3, srdb=S_DBG)
        a(f'v_mov_b32 v{T}, 1'); a(f's_lshl_b32 s{sT0}, s{sCB}, 2'); a(f's_add_u32 s{sT0}, s{sT0}, {HFLAG}')
        a('s_mov_b64 exec, 1'); a(f'buffer_store_dword v{T}, v{vZERO}, {srd(S_RM)}, s{sT0} offen sc1'); a('s_mov_b64 exec, -1')
        a('s_waitcnt vmcnt(0)')
        a.cond_join(Lnr, snap)
        self.stamp('p4_done')
        a(f's_mov_b32 s{sIT}, {DELTA:#x}'); a(f's_mov_b32 s{sPH}, 5')
        a.wait_all()
        a('s_branch L_iter')
        a.label(Lf); a.forget()
        self.resid_add(ACC)
        a(f's_lshl_b32 s{sT0}, s{sXCC}, 4'); a(f's_add_u32 s{sT0}, s{sT0}, s{sT4}'); a(f's_lshl_b32 s{sT0}, s{sT0}, 14')
        for q in range(2):
            a(f'v_permlane16_swap_b32 v{vRP+4*q}, v{vRP+4*q+2}'); a(f'v_permlane16_swap_b32 v{vRP+4*q+1}, v{vRP+4*q+3}')
        for q in range(2):
            a(f'buffer_store_dwordx4 {v(vRP+4*q,4)}, v{vOUT}, {srd(S_MISC)}, s{sT0} offen offset:{64*q}')
        self.stamp('end')
    def stouch(self, ptr, mul, imm, l0, n, extra=None, pre=None):
        a = self.a
        if n <= 0: return
        key = (ptr, mul, imm, extra)
        if getattr(self, 'st_key', None) != key:
            if pre: pre()
            else: a(f's_mul_i32 s{sTMPB}, s{sQ}, {mul}')
            if imm: a(f's_add_u32 s{sTMPB}, s{sTMPB}, {imm}')
            if extra is not None: a(f's_add_u32 s{sTMPB}, s{sTMPB}, s{extra}')
            a(f's_add_u32 s4, s{KA+2*ptr}, s{sTMPB}'); a(f's_addc_u32 s5, s{KA+2*ptr+1}, 0')
            self.st_key = key
        for i in range(l0, l0+n):
            if self.sm_out >= 15:
                a.allow_smem_wait = True; a._put_raw_wait(14); a.allow_smem_wait = False
                self.sm_out = 14
            a(f's_load_dword s{6 + (i & 1)}, s[4:5], {128*i}')
            self.sm_out += 1
    def drain_lg(self):
        self.a('s_waitcnt lgkmcnt(0)'); self.sm_out = 0
    def tstream(self, items):
        self.tq_items = list(items); self.tq_pos = 0
    def vtouch(self, name):
        a = self.a
        if name in ('w1a', 'w1b'):
            a(f's_mul_i32 s{sTMPB}, s{sQ}, 7168');
            if name == 'w1b': a(f's_add_u32 s{sTMPB}, s{sTMPB}, {256*3584}')
            sr, n = S_W1, 56
        elif name in ('w2a', 'w2b'):
            a(f's_lshr_b32 s{sT0}, s{sQ}, 5'); a(f's_mul_i32 s{sT0}, s{sT0}, {448*1024}')
            a(f's_and_b32 s{sT1}, s{sQ}, 31'); a(f's_mul_i32 s{sT1}, s{sT1}, {7*1024}'); a(f's_add_u32 s{sTMPB}, s{sT0}, s{sT1}')
            if name == 'w2b': a(f's_add_u32 s{sTMPB}, s{sTMPB}, {224*1024}')
            sr, n = S_W2, 56
        elif name == 'wo':
            a(f's_lshl_b32 s{sTMPB}, s{sQ}, 12'); sr, n = S_WO, 32
        elif name == 'xb':
            a(f's_lshl_b32 s{sTMPB}, s{sQ}, 11'); a(f's_add_u32 s{sTMPB}, s{sTMPB}, {XB:#x}'); sr, n = S_WS, 16
        elif name == 'st':
            a(f's_lshl_b32 s{sTMPB}, s{sQ}, 7'); a(f's_add_u32 s{sTMPB}, s{sTMPB}, {STB:#x}'); sr, n = S_WS, 1
        elif name in ('oa', 'ar'):
            a(f's_lshr_b32 s{sT0}, s{sQ}, 3'); a(f's_mul_i32 s{sT0}, s{sT0}, 57344'); a(f's_and_b32 s{sT1}, s{sQ}, 7')
            a(f's_mul_i32 s{sT1}, s{sT1}, {2048 if name == "oa" else 5120}'); a(f's_add_u32 s{sTMPB}, s{sT0}, s{sT1}')
            a(f's_add_u32 s{sTMPB}, s{sTMPB}, {ACT + (0 if name == "oa" else 16384):#x}')
            sr, n = S_WS, (16 if name == 'oa' else 40)
        elif name in ('wqa', 'wqb'):
            a(f's_mul_i32 s{sTMPB}, s{sQ}, 6144')
            if name == 'wqb': a(f's_add_u32 s{sTMPB}, s{sTMPB}, {256*3072}')
            sr, n = S_WQ, 48
        a(f'v_min_u32 v19, {n-1}, v{vLANE}'); a(f'v_lshlrev_b32 v19, 7, v19')
        a(f'buffer_load_dword v17, v19, {srd(sr)}, s{sTMPB} offen', tag='T')
    def tq(self, n):
        if not opt('stouch', 0): return
        while n > 0 and self.tq_items:
            name = self.tq_items[0]
            size = {'wo': 32, 'w1a': 56, 'w1b': 56, 'w2a': 56, 'w2b': 56, 'wq': 96}[name]
            k = min(n, size - self.tq_pos)
            if name == 'wo': self.stouch(2, 4096, 0, self.tq_pos, k)
            elif name == 'wq': self.stouch(1, 12288, 0, self.tq_pos, k)
            elif name in ('w1a', 'w1b'): self.stouch(4, 7168, (name == 'w1b')*256*3584, self.tq_pos, k)
            else:
                def pre():
                    a = self.a
                    a(f's_lshr_b32 s{sT0}, s{sQ}, 5'); a(f's_mul_i32 s{sT0}, s{sT0}, {448*1024}')
                    a(f's_and_b32 s{sT1}, s{sQ}, 31'); a(f's_mul_i32 s{sT1}, s{sT1}, {7*1024}'); a(f's_add_u32 s{sTMPB}, s{sT0}, s{sT1}')
                self.stouch(6, -1, (name == 'w2b')*224*1024, self.tq_pos, k, pre=pre)
            self.tq_pos += k; n -= k
            if self.tq_pos == size: self.tq_items.pop(0); self.tq_pos = 0
    RB1 = 32; RB3 = 128
    def b1_load(self):
        a = self.a; i = 0
        for ds in range(4):
            for mat in range(3):
                for h in range(2):
                    a(f's_add_u32 s{sTMPA}, s{sB1S}, {(32*ds + 16*h)*3072 + mat*1024}')
                    a(f'buffer_load_dwordx4 {v(self.RB1+4*i,4)}, v{hD1}, {srd(S_WQ)}, s{sTMPA} offen', tag='B1'); i += 1
                    if self.ilv: self.tq(self.ilv)
    def b1_write(self):
        a = self.a; i = 0
        for ds in range(4):
            for mat in range(3):
                for h in range(2):
                    a(f'ds_write_b128 v3, {v(self.RB1+4*i,4)} offset:{ds*6144 + mat*2048 + h*1024}'); i += 1
    def b3_load(self, part):
        a = self.a
        for ds in range(2):
            s = 8*part + ds
            a(f's_add_u32 s{sTMPA}, s{sB3S}, {s*32*3584}')
            for j in range(7):
                a(f'buffer_load_dwordx4 {v(self.RB3+4*(14*part+7*ds+j),4)}, v{hD3+j}, {srd(S_W1)}, s{sTMPA} offen', tag=f'B3{part}')
                if self.ilv: self.tq(self.ilv)
    def b3_write(self, part):
        a = self.a
        for ds in range(2):
            for j in range(7):
                a(f'ds_write_b128 v{4+part}, {v(self.RB3+4*(14*part+7*ds+j),4)} offset:{ds*7168 + j*1024}')
    def h_bias(self):
        a = self.a
        P5 = KA + 10
        a(f's_mov_b32 s{S_MISC}, s{P5}'); a(f's_and_b32 s{S_MISC+1}, s{P5+1}, 0xffff'); a(f's_mov_b32 s{S_MISC+2}, {1792*2}'); a(f's_mov_b32 s{S_MISC+3}, 0x20000')
        a(f's_mul_i32 s{sT0}, s{sC}, 224')
        a(f'v_min_u32 v17, 27, v{vLANE}'); a(f'v_lshrrev_b32 v18, 2, v17'); a(f'v_and_b32 v17, 3, v17')
        a(f'v_lshlrev_b32 v19, 5, v18'); a(f'v_lshlrev_b32 v20, 3, v17'); a(f'v_add_u32 v19, v19, v20')
        a(f'buffer_load_dwordx2 v[24:25], v19, {srd(S_MISC)}, s{sT0} offen')
    def h_bias_write(self):
        a = self.a
        a(f'v_min_u32 v17, 27, v{vLANE}'); a(f'v_lshrrev_b32 v18, 2, v17'); a(f'v_and_b32 v17, 3, v17')
        a(f'v_lshlrev_b32 v19, 6, v18'); a(f'v_lshlrev_b32 v20, 4, v17'); a(f'v_add_u32 v19, v19, v20'); a(f'v_add_u32 v19, {CR+512}, v19')
        a(f's_mov_b32 s{sT1}, {f2u(LOG2E):#x}')
        a(f'v_lshlrev_b32 v28, 16, v24'); a(f'v_and_b32 v29, 0xffff0000, v24'); a(f'v_lshlrev_b32 v30, 16, v25'); a(f'v_and_b32 v31, 0xffff0000, v25')
        for k in range(4): a(f'v_mul_f32 v{28+k}, s{sT1}, v{28+k}')
        a(f'ds_write_b128 v19, v[28:31]')
    def stage_reg(self, n): return self.RB1 + 16*(n-2) if n < 8 else self.RB3 + 16*(n-8)
    def b4_stage_load(self, n):
        a = self.a
        for h in range(2):
            for i in range(2):
                a(f's_add_u32 s{sTMPA}, s{sB4S}, {(self.w2_rowbase(n, h) + 8*i)*1024}')
                a(f'buffer_load_dwordx4 {v(self.stage_reg(n) + 8*h + 4*i, 4)}, v{hD2}, {srd(S_W2)}, s{sTMPA} offen', tag=f'S4_{n}')
    def b4_stage_write(self, n):
        a = self.a
        part, off = self.b4_slot(n)
        a(f'v_add_u32 v17, s{sB4H if part == "H" else sB4L}, v{vL16}')
        for h in range(2):
            for i in range(2):
                a(f'ds_write_b128 v17, {v(self.stage_reg(n) + 8*h + 4*i, 4)} offset:{off + h*2048 + i*1024}')
    def h_colsum_qkv(self):
        a = self.a; ONE = 20; AC = 24; WB = 240; AT, AV = 17, 18
        for k in range(4): a(f'v_mov_b32 v{ONE+k}, s{sONES}')
        a(f's_and_b32 s{sT0}, s{sWAVE}, 1'); a(f's_lshl_b32 s{sT0}, s{sT0}, 5'); a(f'v_xor_b32 v{AV}, s{sT0}, v15')
        a(f's_lshr_b32 s{sT0}, s{sWAVE}, 1'); a(f's_lshl_b32 s{sT0}, s{sT0}, 11'); a(f'v_add_u32 v{AT}, s{sT0}, v{AV}')
        a(f'v_add_u32 v{AV}, 4096, v{AV}')
        for k in range(8): a(f'v_mov_b32 v{AC+k}, 0')
        def rd(s):
            so = (s % 8)*6144; b = WB + 8*(s % 2)
            if s == 8:
                a(f'v_add_u32 v{AT}, {8*6144}, v{AT}'); a(f'v_add_u32 v{AV}, {8*6144}, v{AV}')
            for h in range(2):
                a(f'ds_read_b64_tr_b16 {v(b+2*h,2)}, v{AT} offset:{so+h*1024}')
                a(f'ds_read_b64_tr_b16 {v(b+4+2*h,2)}, v{AV} offset:{so+h*1024}')
        rd(0); rd(1)
        for s in range(16):
            b = WB + 8*(s % 2)
            a(f'v_mfma_f32_16x16x32_bf16 {v(AC,4)}, {v(b,4)}, {v(ONE,4)}, {v(AC,4)}')
            a(f'v_mfma_f32_16x16x32_bf16 {v(AC+4,4)}, {v(ONE,4)}, {v(b+4,4)}, {v(AC+4,4)}')
            if s + 2 < 16: rd(s+2)
        CS = CR + 1024
        a(f'v_lshrrev_b32 v{AT}, 4, v{vLANE}'); a(f'v_lshlrev_b32 v{AT}, 4, v{AT}')
        a(f's_lshl_b32 s{sT0}, s{sWAVE}, 6'); a(f's_add_u32 s{sT0}, s{sT0}, {CS}'); a(f'v_add_u32 v{AT}, s{sT0}, v{AT}')
        a(f's_mov_b32 exec_lo, 0x00010001'); a(f's_mov_b32 exec_hi, 0x00010001')
        a(f'ds_write_b128 v{AT}, {v(AC,4)}')
        a('s_mov_b64 exec, 0xffff')
        a(f's_and_b32 s{sT0}, s{sWAVE}, 1'); a(f's_lshl_b32 s{sT0}, s{sT0}, 6'); a(f's_add_u32 s{sT0}, s{sT0}, {CS+256}')
        a(f'v_lshlrev_b32 v{AV}, 2, v{vLANE}'); a(f'v_add_u32 v{AV}, s{sT0}, v{AV}')
        a(f'ds_write_b32 v{AV}, v{AC+4}')
        a('s_mov_b64 exec, -1')
        self.drain_lg()
    def h_colsum_w1(self):
        a = self.a; ONE = 20; AC = 24; WB = 240; A0, A1 = 17, 18
        for k in range(4): a(f'v_mov_b32 v{ONE+k}, s{sONES}')
        a(f's_lshl_b32 s{sT0}, s{sWAVE}, 5'); a(f'v_add_u32 v{A0}, s{sT0}, v16'); a(f'v_add_u32 v{A1}, {9*7168}, v{A0}')
        for k in range(8): a(f'v_mov_b32 v{AC+k}, 0')
        def rd(s):
            base = A0 if s < 9 else A1; so = (s if s < 9 else s - 9)*7168; b = WB + 8*(s % 2)
            for q in range(2):
                for h in range(2):
                    a(f'ds_read_b64_tr_b16 {v(b+4*q+2*h,2)}, v{base} offset:{so+h*3584+q*128}')
        rd(0); rd(1)
        for s in range(16):
            b = WB + 8*(s % 2)
            for q in range(2):
                a(f'v_mfma_f32_16x16x32_bf16 {v(AC+4*q,4)}, {v(b+4*q,4)}, {v(ONE,4)}, {v(AC+4*q,4)}')
            if s + 2 < 16: rd(s+2)
        a(f'v_lshrrev_b32 v{A0}, 4, v{vLANE}'); a(f'v_lshlrev_b32 v{A0}, 4, v{A0}')
        a(f's_lshl_b32 s{sT0}, s{sWAVE}, 6'); a(f's_add_u32 s{sT0}, s{sT0}, {CR}'); a(f'v_add_u32 v{A0}, s{sT0}, v{A0}')
        a(f's_mov_b32 exec_lo, 0x00010001'); a(f's_mov_b32 exec_hi, 0x00010001')
        a(f'ds_write_b128 v{A0}, {v(AC,4)}'); a(f'ds_write_b128 v{A0}, {v(AC+4,4)} offset:256')
        a('s_mov_b64 exec, -1')
        self.drain_lg()
    def helper(self):
        a = self.a; self.who = 'h'; self.sm_out = 0; self.ilv = 0; self.tq_items = []; self.tq_pos = 0
        hb = lambda n: self.barrier(n, drain=False)
        a.label('L_helper')
        a.vmq, a.lgq, a.hist = list(self.hsnap[0]), list(self.hsnap[1]), list(self.hsnap[2]); a.alts = []
        Lz = self.lab('nozero')
        a(f's_cmp_ge_u32 s2, 8'); snap = a.cond_skip(f's_cbranch_scc1 {Lz}')
        a(f's_cmp_lg_u32 s{sWAVE}, 0'); a(f's_cbranch_scc1 {Lz}')
        a(f's_mul_i32 s{sT0}, s2, {XSTRIDE:#x}')
        a(f's_add_u32 s{S_RM}, s{KA+18}, s{sT0}'); a(f's_addc_u32 s{S_RM+1}, s{KA+19}, 0'); a(f's_and_b32 s{S_RM+1}, s{S_RM+1}, 0xffff')
        a(f'v_lshlrev_b32 v3, 2, v{vLANE}')
        a(f'buffer_store_dword v{vZERO}, v3, {srd(S_RM)}, 0 offen sc1')
        a(f'buffer_store_dword v{vZERO}, v3, {srd(S_RM)}, 0 offen offset:256 sc1')
        a(f'buffer_store_dword v{vZERO}, v3, {srd(S_RM)}, 0 offen offset:{HFLAG} sc1')
        a('s_waitcnt vmcnt(0)')
        a(f'v_mov_b32 v4, 1'); a(f's_lshl_b32 s{sT0}, s2, 2')
        a('s_mov_b64 exec, 1')
        a(f'buffer_store_dword v4, v{vZERO}, {srd(S_DBG)}, s{sT0} offen offset:32 sc1')
        a('s_mov_b64 exec, -1')
        a('s_waitcnt vmcnt(0)')
        a.cond_join(Lz, snap)
        a(f's_lshr_b32 s{sQ}, s2, 3'); a(f's_and_b32 s{sQ}, s{sQ}, 31')
        Lw = self.lab('warm1'); Lw2 = self.lab('warm2'); Lw3 = self.lab('warm3')
        if opt('tlb', 1):
            a(f's_lshl_b32 s{sT0}, s{sQ}, 2'); a(f's_add_u32 s{sT0}, s{sT0}, s{sWAVE}'); a(f's_and_b32 s{sT0}, s{sT0}, 15')
            a(f's_lshl_b32 s{sT1}, s{sT0}, 2'); a(f's_mov_b32 s4, 0x56421010'); a(f's_mov_b32 s5, 0x99997799')
            a(f's_lshr_b64 s[4:5], s[4:5], s{sT1}'); a(f's_and_b32 s{sT1}, s4, 15'); a(f's_lshl_b32 s{sT1}, s{sT1}, 3')
            a(f's_load_dwordx2 s[4:5], s[0:1], s{sT1}')
            a(f's_mul_i32 s{sT2}, s{sXCC}, {XSTRIDE:#x}'); a(f's_add_u32 s{sT2}, s{sT2}, 0x8000')
            a(f's_bitcmp1_b32 s{sT0}, 0'); a(f's_cselect_b32 s{sT3}, 0x200000, 0'); a(f's_add_u32 s{sT2}, s{sT2}, s{sT3}')
            a(f's_cmp_eq_u32 s{sT1}, 72'); a(f's_cselect_b32 s{sT2}, s{sT2}, 0')
            a('s_waitcnt lgkmcnt(0)')
            a(f's_add_u32 s4, s4, s{sT2}'); a(f's_addc_u32 s5, s5, 0')
            a(f's_load_dword s6, s[4:5], 128')
        a(f's_lshl_b32 s{sQ}, s{sQ}, 2'); a(f's_add_u32 s{sQ}, s{sQ}, s{sWAVE}')
        a(f's_lshl_b32 s{sT2}, s{sXCC}, 18'); a(f's_sub_u32 s{sT2}, s{sT2}, 16384'); a(f's_cmp_eq_u32 s{sXCC}, 0'); a(f's_cselect_b32 s{sT2}, 0, s{sT2}')
        a(f's_mul_i32 s{sTMPA}, s{sQ}, {17*128}'); a(f's_add_u32 s{sTMPA}, s{sTMPA}, s{sT2}')
        a(f'v_min_u32 v3, 16, v{vLANE}'); a(f'v_lshlrev_b32 v3, 7, v3')
        a(f'buffer_load_dword v17, v3, {srd(S_MISC)}, s{sTMPA} offen', tag='T')
        for nm in opt('vt_start', 'xb+st+wqa+wqb').split('+'):
            if nm and nm != 'none': self.vtouch(nm)
        a.vmq = [({('v', 17)}, 'T')]*8
        self.st_key = None
        if opt('stouch', 0): self.stouch(1, 12288, 0, 0, opt('t0', 15))
        l = vLANE; t0, t1, t2 = 20, 21, 22
        a(f'v_lshrrev_b32 v{t0}, 2, v{l}'); a(f'v_mul_u32_u24 v{t0}, 3072, v{t0}')
        a(f'v_bfe_u32 v{t1}, v{l}, 4, 1'); a(f'v_lshlrev_b32 v{t1}, 1, v{t1}'); a(f'v_and_b32 v{t2}, 3, v{l}'); a(f'v_xor_b32 v{t1}, v{t1}, v{t2}')
        a(f'v_lshlrev_b32 v{t1}, 4, v{t1}'); a(f'v_add_u32 v{hD1}, v{t0}, v{t1}')
        a(f'v_lshrrev_b32 v{t0}, 3, v{l}'); a(f'v_lshlrev_b32 v{t0}, 10, v{t0}')
        a(f'v_and_b32 v{t1}, 7, v{l}'); a(f'v_lshrrev_b32 v{t2}, 4, v{l}'); a(f'v_lshlrev_b32 v{t2}, 1, v{t2}'); a(f'v_xor_b32 v{t1}, v{t1}, v{t2}')
        a(f'v_lshlrev_b32 v{t1}, 4, v{t1}'); a(f'v_add_u32 v{hD2}, v{t0}, v{t1}')
        a(f's_mov_b32 s{sT0}, 4682')
        for j in range(7):
            a(f'v_add_u32 v{t0}, {64*j}, v{l}')
            a(f'v_mul_u32_u24 v{t1}, s{sT0}, v{t0}'); a(f'v_lshrrev_b32 v{t1}, 16, v{t1}')
            a(f'v_mul_u32_u24 v{t2}, 14, v{t1}'); a(f'v_sub_u32 v{t0}, v{t0}, v{t2}')
            a(f'v_mul_u32_u24 v{t1}, 3584, v{t1}'); a(f'v_lshlrev_b32 v{t0}, 4, v{t0}')
            a(f'v_add_u32 v{hD3+j}, v{t0}, v{t1}')
        a(f'v_lshrrev_b32 v{t0}, 4, v{l}'); a(f'v_lshlrev_b32 v{t0}, 2, v{t0}'); a(f'v_bfe_u32 v{t1}, v{l}, 2, 2'); a(f'v_add_u32 v{t0}, v{t0}, v{t1}')
        a(f'v_and_b32 v{t1}, 3, v{l}'); a(f'v_lshlrev_b32 v{t1}, 3, v{t1}')
        a(f'v_mul_u32_u24 v{t2}, 224, v{t0}'); a(f'v_add_u32 v16, v{t2}, v{t1}')
        a(f'v_lshlrev_b32 v{t2}, 6, v{t0}'); a(f'v_add_u32 v{t2}, v{t2}, v{t1}'); a(f'v_bfe_u32 v{t1}, v{l}, 4, 1'); a(f'v_lshlrev_b32 v{t1}, 5, v{t1}')
        a(f'v_add_u32 v15, v{t2}, v{t1}')
        a(f's_mov_b32 s{sONES}, 0x3f803f80')
        self.role()
        a(f's_lshl_b32 s{sQ}, s{sSLOT}, 2'); a(f's_add_u32 s{sQ}, s{sQ}, s{sWAVE}'); self.st_key = None
        a(f's_mul_i32 s{sB1S}, s{sWAVE}, {4*32*3072}'); a(f's_lshl_b32 s{sT0}, s{sC}, 6'); a(f's_add_u32 s{sB1S}, s{sB1S}, s{sT0}')
        a(f's_mul_i32 s{sB1M}, s{sWAVE}, {4*6144}')
        a(f's_lshl_b32 s{sB2S}, s{sWAVE}, 13'); a(f's_lshl_b32 s{sT0}, s{sCB}, 7'); a(f's_add_u32 s{sB2S}, s{sB2S}, s{sT0}')
        a(f's_lshl_b32 s{sB2M}, s{sWAVE}, 10')
        a(f's_mul_i32 s{sB3S}, s{sWAVE}, {2*32*3584}'); a(f's_mul_i32 s{sT0}, s{sC}, 224'); a(f's_add_u32 s{sB3S}, s{sB3S}, s{sT0}')
        a(f's_mul_i32 s{sB3M}, s{sWAVE}, {2*7168}')
        a(f's_mul_i32 s{sB4S}, s{sWAVE}, {448*1024}'); a(f's_lshl_b32 s{sT0}, s{sCB}, 7'); a(f's_add_u32 s{sB4S}, s{sB4S}, s{sT0}')
        a(f's_mul_i32 s{sB4L}, s{sWAVE}, {B4LS}'); a(f's_mul_i32 s{sB4H}, s{sWAVE}, {B4HS}'); a(f's_add_u32 s{sB4H}, s{sB4H}, {B4HI}')
        if opt('twait0', 1): a('s_waitcnt vmcnt(0)')
        self.stamp('h_T0')
        self.b1_load()
        self.h_bias()
        a(f'v_add_u32 v3, s{sB1M}, v{vL16}'); a(f'v_add_u32 v4, s{sB3M}, v{vL16}'); a(f'v_add_u32 v5, {8*7168}, v4')
        self.stamp('h_role')
        self.b1_write()
        self.h_bias_write()
        self.drain_lg()
        self.stamp('h_B1')
        for it in range(2):
            a.comment(f'---- helper iteration {it} ----')
            if it == 1: a(f's_mov_b32 s{sIT}, {DELTA:#x}')
            B = (lambda n: hb(n)) if it == 0 else (lambda n: a('s_barrier'))
            def VT(key, dflt=''):
                for nm in opt(f'{key}{it}', dflt).split('+'):
                    if nm and nm != 'none': self.vtouch(nm)
            stage = (it == 1) and opt('stage', 1)
            B('bB1')
            if it == 0:
                self.h_colsum_qkv();
            B('bX1')
            VT('v_bX1_', 'oa+wo+w1a' if it == 0 else 'wo')
            if opt('twait', 1): a.wait_vm(0)
            self.dma_B2(0, 15)
            if stage and opt('stage_early', 1):
                for n in range(2, 8): self.b4_stage_load(n)
            B('b2')
            B('b3')
            self.dma_B2(15, 16)
            if it == 0:
                a.wait_vm_tag('B2')
            else:
                self.b3_write(0)
                a.wait_vm_tag('B2')
            self.stamp('h_B2')
            B('b4')
            B('bX2')
            if it == 0:
                VT('v_b4_', 'w1b+ar')
                if opt('twait', 1): a.wait_vm(0)
                self.b3_load(0)
                a.wait_vm_tag('B30')
                self.b3_write(0)
                self.b3_load(1)
            B('b5')
            if it == 0: a.wait_vm_tag('B31')
            self.b3_write(1)
            self.drain_lg()
            self.stamp('h_B3')
            B('b6')
            if it == 0: self.h_colsum_w1()
            B('bX3')
            VT('v_bX3_', 'w2a+w2b' if it == 0 else '')
            if it == 0 and opt('twait', 1): a.wait_vm(0)
            if it == 0: self.stamp('h_T3')
            self.dma_B4(0); self.dma_B4(1)
            if stage:
                for n in range(8, 14): self.b4_stage_load(n)
            B('b7')
            if stage:
                for n in range(2, 9): self.b4_stage_write(n)
                self.drain_lg()
                a.wait_vm_tag('B4_1')
            else:
                for n in range(2, 9): self.dma_B4(n)
                a.wait_vm(0)
            self.stamp('h_B4')
            B('bB4')
            B('A1')
            if stage:
                self.b4_stage_write(9); self.b4_stage_write(10)
            else:
                self.dma_B4(9); self.dma_B4(10)
            B('A2')
            if stage:
                for n in (11, 12, 13): self.b4_stage_write(n)
                self.drain_lg()
                B('B1p'); B('B2p')
            else:
                self.dma_B4(11); self.dma_B4(12); self.dma_B4(13)
                a.wait_vm_tag('B4_10')
                B('B1p')
                a.wait_vm(0)
                B('B2p')
            B('b9'); B('b10')
            if it == 0:
                self.b1_write()
                self.drain_lg()
                self.stamp('h_B1b')
        print('touches left at end of it1:', self.tq_items, self.tq_pos, file=sys.stderr)
        a.wait_all(force=True)
        a('s_endpgm')
    def build(self):
        a = self.a
        self.prologue()
        self.phase0_load()
        self.lane_consts()
        self.phase0()
        a.wait_all()
        a.label('L_iter')
        self.p1(); self.p2(); self.p3(); self.p4()
        a.wait_all(force=True)
        a('s_endpgm')
        self.helper()
        a.label('L_end')
        a('s_endpgm')
        cb = self.bars['c']; hb = self.bars['h']
        assert cb == hb, (cb, hb)
        body = a.text()
        hdr = open(os.path.join(os.path.dirname(os.path.abspath(__file__)), 'header.txt')).read()
        return hdr + f"""; @launch grid=(256,1,1) block=(512,1,1) lds={LDS_BYTES}
.amdgcn_target "amdgcn-amd-amdhsa--gfx950"
.text
.globl {KNAME}
.p2align 8
.type {KNAME},@function
{KNAME}:
{body}.section .rodata,"a"
.p2align 6
.amdhsa_kernel {KNAME}
  .amdhsa_next_free_vgpr 256
  .amdhsa_next_free_sgpr 102
  .amdhsa_accum_offset 256
  .amdhsa_group_segment_fixed_size 0
  .amdhsa_kernarg_size 80
  .amdhsa_user_sgpr_count 2
  .amdhsa_user_sgpr_kernarg_segment_ptr 1
  .amdhsa_system_sgpr_workgroup_id_x 1
.end_amdhsa_kernel
"""

if __name__ == '__main__':
    import argparse
    ap = argparse.ArgumentParser()
    ap.add_argument('-o', default='cdna_kernels/' + NAME + '.s')
    ap.add_argument('--ts', action='store_true')
    args = ap.parse_args()
    g = Gen(ts=args.ts)
    txt = g.build()
    open(args.o, 'w').write(txt)
    print(f'wrote {args.o}: {g.a.n_ins} instructions, {g.a.n_nops} nops, {g.a.n_waits} waits, max vm queue {g.a.maxvm}, {len(txt)} bytes', file=sys.stderr)
    if args.ts:
        print('stamps:', ','.join(g.names), file=sys.stderr); print('hstamps:', ','.join(g.hnames), file=sys.stderr)
        open('stamps.txt', 'w').write(','.join(g.names) + '\n' + ','.join(g.hnames) + '\n')
```

```python
import sys, os, math, struct
sys.path.insert(0, os.path.dirname(os.path.abspath(__file__)))
from asmlib import Asm

NAME = 'interleave_layers__sliding_local_dilated__dense_activation_mish__prompt'
KNAME = NAME + '_kernel'
def f2u(x): return struct.unpack('<I', struct.pack('<f', x))[0]
LOG2E = 1.4426950408889634
LN2 = 0.6931471805599453
OPT = dict(x.split('=') for x in os.environ.get('OPT', '').split(',') if x)
def opt(k, d): return type(d)(OPT.get(k, d))

XSTRIDE = 0x400000
FLAGS = 0x0; HFLAG = 0x400
XB = 0x10000; STB = 0x50000
HSET = 0x60000; HSZ = 0x8000; HSTAT = 0x4000
ACT = 0x100000
DELTA = 2*HSZ
TS = 0x3C0000
LDS_BYTES = 163840
B1 = 0; B2 = 98304; B2X = 90112; B3 = 0
B4HI = 114688; B4HS = 8192
B4LS = 28672
KVX = 57344; HPX = KVX + 8192
STS = 159744 + 2304
CR = 159744
S_WS, S_WQ, S_WO, S_W1, S_W2, S_MISC, S_RM, S_DBG = 8, 12, 16, 20, 24, 28, 32, 36
sXCC, sSLOT, sWAVE, sGRP, sC, sRB, sCB, sIT = 40, 41, 42, 43, 44, 45, 46, 47
sT0, sT1, sT2, sT3, sT4, sT5 = 48, 49, 50, 51, 52, 53
sPH = 54
sB1S, sB1M, sB2S, sB2M, sB3S, sB3M, sB4S, sB4H, sB4L = 55, 56, 57, 58, 59, 60, 61, 62, 63
KA = 64
sXO = 84; sFLG = 85; sSPIN = 86; sTMPA = 87; sTMPB = 88; sONES = 89; sC1 = 90; sC2 = 91
sTSB = 92; sFIRST = 93; sEPS = 94; sTA = 96; sQ = 100; sHLP = 101; sRE = 3
def srd(b): return f's[{b}:{b+3}]'
vLANE, vL16, vZERO, vPOLL, vSTO, vOUT = 0, 1, 2, 3, 4, 5
vR1 = 6; vR2 = 8; vR3 = 12
vCSQ = 14; vCSK = 22; vCSV = 30
vMC = 32; vMP = 36; vMF = 40
vRP = 44; vPAT = 52
ACC = 56; WF = 120; XW = 152; TMP = 232
hD1, hD2, hD3 = 6, 7, 8
hT = 16
hDUM = 24
def v(n, k=1): return f'v{n}' if k == 1 else f'v[{n}:{n+k-1}]'
XMOD = os.environ.get('XMOD', ' sc1')
SMOD = {'': '', 'nt': ' nt', 'sc0': ' sc0'}[opt('smod', '')]
AMOD = {'': '', 'nt': ' nt', 'sc0': ' sc0'}[opt('amod', '')]
OMOD = {'': '', 'nt': ' nt', 'sc1': ' sc1', 'ntsc1': ' nt sc1'}[opt('omod', '')]

class Gen:
    def __init__(self, ts=False):
        self.a = Asm(); self.ts = ts; self.nts = 0; self.uid = 0; self.names = []; self.hnames = []; self.nhts = 0
        self.bars = {'c': [], 'h': []}; self.who = 'c'
    def lab(self, p): self.uid += 1; return f'L_{p}_{self.uid}'
    def stamp(self, name):
        if not self.ts: return
        a = self.a; r = TMP+1 if self.who == 'c' else 19
        n = self.nts if self.who == 'c' else self.nhts
        saved_lg = list(a.lgq)
        a.wait_lg(0)
        a(f's_memtime s[{sTA}:{sTA+1}]')
        a('s_waitcnt lgkmcnt(0)'); a.smem_pending = False
        a(f'v_mov_b32 v{r}, s{sTA}')
        a(f's_add_u32 s{sTMPB}, s{sTSB}, {4*n}')
        a(f's_cmp_lg_u32 s{sIT}, 0'); a(f's_cselect_b32 s95, 128, 0'); a(f's_add_u32 s{sTMPB}, s{sTMPB}, s95')
        a('s_mov_b64 exec, 1')
        a(f'buffer_store_dword v{r}, v{vZERO}, {srd(S_WS)}, s{sTMPB} offen')
        a('s_mov_b64 exec, -1')
        if self.who == 'c': self.names.append(name); self.nts += 1
        else: self.hnames.append(name); self.nhts += 1
    def fstamp(self, phase, i):
        if self.ts and opt('fs', '') == phase:
            r = [4, 6, 56, 58, 60][i]
            self.a.raw(f's_memtime s[{r}:{r+1}]')
    def fstamp_store(self, phase, n):
        if self.ts and opt('fs', '') == phase:
            a = self.a
            a('s_waitcnt lgkmcnt(0)')
            for i in range(n):
                r = [4, 6, 56, 58, 60][i]
                a(f'v_mov_b32 v{TMP+1}, s{r}')
                a(f's_add_u32 s{sTMPB}, s{sTSB}, {4*(24+i)}')
                a(f's_cmp_lg_u32 s{sIT}, 0'); a(f's_cselect_b32 s95, 128, 0'); a(f's_add_u32 s{sTMPB}, s{sTMPB}, s95')
                a('s_mov_b64 exec, 1')
                a(f'buffer_store_dword v{TMP+1}, v{vZERO}, {srd(S_WS)}, s{sTMPB} offen')
                a('s_mov_b64 exec, -1')
    def barrier(self, name, drain=True):
        if drain: self.a.wait_lg(0)
        self.a('s_barrier'); self.bars[self.who].append(name)
    def poll(self, target_sgpr, cachemod='sc1', srdb=S_WS, keep_lg=False, target_imm=None):
        a = self.a; L = self.lab('poll'); Lo = self.lab('pollok')
        tgt = f's{target_sgpr}' if target_imm is None else str(target_imm)
        if keep_lg: a.wait_vm(0)
        else: a.wait_all()
        a(f's_mov_b32 s{sSPIN}, 0')
        a.label(L)
        a(f'buffer_load_dword v{TMP}, v{vPOLL}, {srd(srdb)}, 0 offen {cachemod}')
        a('s_waitcnt vmcnt(0)')
        a(f'v_cmp_gt_u32 vcc, {tgt}, v{TMP}')
        a(f's_cbranch_vccz {Lo}')
        a(f's_add_u32 s{sSPIN}, s{sSPIN}, 1')
        a(f's_cmp_lt_u32 s{sSPIN}, 0x40000')
        a(f's_cbranch_scc1 {L}')
        a(f'v_mov_b32 v{TMP}, 0xdead')
        a(f's_movk_i32 s{sSPIN}, 252')
        a(f'buffer_store_dword v{TMP}, v{vZERO}, {srd(S_DBG)}, s{sSPIN} offen sc1')
        a('s_waitcnt vmcnt(0)')
        a.label(Lo)
        a.forget()
    def set_flag(self, val_sgpr):
        a = self.a
        a.wait_vm(0)
        a(f'v_mov_b32 v{TMP}, s{val_sgpr}')
        a('s_mov_b64 exec, 1')
        a(f'buffer_store_dword v{TMP}, v{vZERO}, {srd(S_WS)}, s{sFLG} offen')
        a('s_mov_b64 exec, -1')
    def dma(self, voff, srdb, soff_base, soff_imm, m0_base, m0_imm, tag):
        a = self.a
        a(f's_add_u32 m0, s{m0_base}, {m0_imm}')
        a(f's_add_u32 s{sTMPA}, s{soff_base}, {soff_imm}')
        a(f'buffer_load_dwordx4 v{voff}, {srd(srdb)}, s{sTMPA} offen lds', tag=tag)
        if getattr(self, 'ilv', 0): self.tq(self.ilv)
    def emit(self, x):
        if isinstance(x, tuple): self.a(x[0], tag=x[1])
        else: self.a(x)
    def emit_all(self, L):
        for x in L: self.emit(x)
    def dma_B1(self):
        for ds in range(4):
            for mat in range(3):
                for h in range(2):
                    self.dma(hD1, S_WQ, sB1S, (32*ds + 16*h)*3072 + mat*1024, sB1M, ds*6144 + mat*2048 + h*1024, 'B1')
    def dma_B2(self, s0, s1):
        for s in range(s0, s1):
            self.dma(hD2, S_WO, sB2S, 32*s*1024, sB2M, (B2 + s*4096) if s < 15 else B2X, 'B2')
    def dma_B3(self, part):
        for ds in range(2):
            s = 8*part + ds
            for j in range(7):
                self.dma(hD3 + j, S_W1, sB3S, s*32*3584, sB3M, s*7168 + j*1024, 'B3')
    PI = [0, 1, 3, 4, 7, 8, 10, 11, 2, 5, 6, 9, 12, 13]
    @classmethod
    def w2_rowbase(cls, n, h):
        n = cls.PI[n]
        P, i = divmod(n, 7)
        if i < 3: return 224*P + 32*i + 16*h
        if i < 6: return 224*P + 112 + 32*(i-3) + 16*h
        return 224*P + (96 if h == 0 else 208)
    @staticmethod
    def b4_slot(n):
        s = n if n < 9 else n - 9
        return ('H', s*4096) if s < 2 else ('L', (s-2)*4096)
    def dma_B4(self, n):
        part, off = self.b4_slot(n)
        for h in range(2):
            for i in range(2):
                self.dma(hD2, S_W2, sB4S, (self.w2_rowbase(n, h) + 8*i)*1024, sB4H if part == 'H' else sB4L, off + h*2048 + i*1024, f'B4_{n}')
    def touch(self, srdb, base_sgpr_mul, base_imm, nlines, extra_sgpr=None):
        a = self.a
        a(f's_mul_i32 s{sTMPA}, s{sQ}, {base_sgpr_mul}')
        if base_imm: a(f's_add_u32 s{sTMPA}, s{sTMPA}, {base_imm}')
        if extra_sgpr is not None: a(f's_add_u32 s{sTMPA}, s{sTMPA}, s{extra_sgpr}')
        if nlines < 64:
            a(f'v_min_u32 v{hT+1}, {nlines-1}, v{vLANE}'); a(f'v_lshlrev_b32 v{hT+1}, 7, v{hT+1}'); r = hT+1
        else: r = hT
        self.tk = (getattr(self, 'tk', 0) + 1) % 4
        a(f'buffer_load_dword v{hDUM+self.tk}, v{r}, {srd(srdb)}, s{sTMPA} offen', tag='T')
    def touch_wqkv(self): self.touch(S_WQ, 12288, 0, 64); self.touch(S_WQ, 12288, 8192, 32)
    def touch_wo(self): self.touch(S_WO, 4096, 0, 32)
    def touch_w1(self, half): self.touch(S_W1, 7168, half*256*3584, 56)
    def touch_w2(self, half):
        a = self.a
        a(f's_lshr_b32 s{sT0}, s{sQ}, 5'); a(f's_mul_i32 s{sT0}, s{sT0}, {448*1024}')
        a(f's_and_b32 s{sT1}, s{sQ}, 31'); a(f's_mul_i32 s{sT1}, s{sT1}, {7*1024}'); a(f's_add_u32 s{sT0}, s{sT0}, s{sT1}')
        a(f's_add_u32 s{sTMPA}, s{sT0}, {half*224*1024}')
        a(f'v_min_u32 v{hT+1}, 55, v{vLANE}'); a(f'v_lshlrev_b32 v{hT+1}, 7, v{hT+1}')
        self.tk = (getattr(self, 'tk', 0) + 1) % 4
        a(f'buffer_load_dword v{hDUM+self.tk}, v{hT+1}, {srd(S_W2)}, s{sTMPA} offen', tag='T')
    def reduce_pair_sum(self, x, y, u, a=None):
        a = a or self.a
        a(f'v_permlane32_swap_b32 v{x}, v{y}'); a(f'v_add_f32 v{x}, v{x}, v{y}')
        a(f'v_mov_b32 v{u}, v{x}'); a(f'v_permlane16_swap_b32 v{u}, v{x}'); a(f'v_add_f32 v{x}, v{x}, v{u}')
        a(f'v_mov_b32 v{y}, v{x}'); a(f'v_permlane32_swap_b32 v{x}, v{y}')
    def stats_finalize(self, q, rstd, mr, a=None):
        a = a or self.a
        a(f'v_add_f32 v{q}, v{q}, v{q+2}'); a(f'v_add_f32 v{q+1}, v{q+1}, v{q+3}')
        self.reduce_pair_sum(q, q+1, q+2, a)
        a(f'v_mul_f32 v{q}, {f2u(1/512.):#x}, v{q}'); a(f'v_mul_f32 v{q+1}, {f2u(1/512.):#x}, v{q+1}')
        a(f'v_fma_f32 v{q+1}, -v{q}, v{q}, v{q+1}'); a(f'v_max_f32 v{q+1}, 0, v{q+1}'); a(f'v_add_f32 v{q+1}, s{sEPS}, v{q+1}')
        a(f'v_rsq_f32 v{rstd}, v{q+1}'); a(f'v_mul_f32 v{mr}, v{q}, v{rstd}')
    def role(self):
        a = self.a; r = TMP if self.who == 'c' else 18
        L = self.lab('role'); Lo = self.lab('roleok')
        a.wait_lg(0)
        a(f'v_mov_b32 v{r+1}, {CR+2048}')
        a(f's_mov_b32 s{sSPIN}, 0')
        a.label(L)
        a(f'ds_read_b32 v{r}, v{r+1}')
        a('s_waitcnt lgkmcnt(0)')
        a(f'v_readfirstlane_b32 s{sSLOT}, v{r}')
        a(f's_cmp_lg_u32 s{sSLOT}, 0'); a(f's_cbranch_scc1 {Lo}')
        a(f's_add_u32 s{sSPIN}, s{sSPIN}, 1'); a(f's_cmp_lt_u32 s{sSPIN}, 0x100000'); a(f's_cbranch_scc1 {L}')
        a.label(Lo)
        a(f's_sub_u32 s{sSLOT}, s{sSLOT}, 1')
        self.role_scalars()
    def role_scalars(self):
        a = self.a
        a(f's_and_b32 s{sSLOT}, s{sSLOT}, 31')
        a(f's_lshr_b32 s{sGRP}, s{sSLOT}, 4'); a(f's_and_b32 s{sC}, s{sSLOT}, 15')
        a(f's_lshr_b32 s{sT0}, s{sC}, 3'); a(f's_lshl_b32 s{sRB}, s{sGRP}, 1'); a(f's_add_u32 s{sRB}, s{sRB}, s{sT0}')
        a(f's_and_b32 s{sCB}, s{sC}, 7')
        a(f's_mov_b32 s{sIT}, 0'); a(f's_mov_b32 s{sPH}, 0'); a(f's_mov_b32 s{sRE}, 0')
        a(f's_lshl_b32 s{sFLG}, s{sSLOT}, 4'); a(f's_lshl_b32 s{sT0}, s{sWAVE}, 2'); a(f's_add_u32 s{sFLG}, s{sFLG}, s{sT0}')
        if self.ts:
            a(f's_lshl_b32 s{sTSB}, s{sFLG}, 6'); a(f's_add_u32 s{sTSB}, s{sTSB}, {TS + (0 if self.who == "c" else 0x8000):#x}')
            r = TMP+2 if self.who == 'c' else 19
            a(f'v_mov_b32 v{r}, s98'); a('s_mov_b64 exec, 1')
            a(f'buffer_store_dword v{r}, v{vZERO}, {srd(S_WS)}, s{sTSB} offen'); a('s_mov_b64 exec, -1')
            if self.who == 'c': self.names = ['start']; self.nts = 1
            else: self.hnames = ['start']; self.nhts = 1
    def prologue(self):
        a = self.a
        a(f's_cmp_ge_u32 s2, 256')
        a(f's_cbranch_scc1 L_end')
        if self.ts:
            a('s_memtime s[98:99]'); a('s_memrealtime s[6:7]'); a('s_waitcnt lgkmcnt(0)'); a('s_mov_b32 s59, s6')
        a(f's_load_dwordx16 s[{KA}:{KA+15}], s[0:1], 0')
        a(f's_load_dwordx4 s[{KA+16}:{KA+19}], s[0:1], 64')
        if opt('cpf', 1):
            a('s_getpc_b64 s[4:5]')
            a.label('L_pc')
            a('s_lshr_b32 s6, s2, 3'); a('s_and_b32 s6, s6, 31'); a('s_lshl_b32 s6, s6, 11')
            a('v_lshrrev_b32 v1, 6, v0'); a('v_lshlrev_b32 v1, 8, v1'); a('v_and_b32 v2, 1, v0'); a('v_lshlrev_b32 v2, 7, v2')
            a('v_add_u32 v1, v1, v2'); a('v_add_u32 v1, s6, v1')
            a('v_min_u32 v1, L_end-L_pc, v1')
            a('s_mov_b64 exec, 3')
            a('global_load_dword v255, v1, s[4:5]', tag='T')
            a('s_mov_b64 exec, -1')
        a(f's_getreg_b32 s{sXCC}, hwreg(HW_REG_XCC_ID, 0, 4)')
        a(f'v_lshrrev_b32 v1, 6, v0')
        a(f'v_and_b32 v{vLANE}, 63, v0')
        a(f'v_readfirstlane_b32 s{sWAVE}, v1')
        a(f's_and_b32 s{sXCC}, s{sXCC}, 7')
        a(f'v_lshlrev_b32 v{vL16}, 4, v{vLANE}')
        a(f'v_mov_b32 v{vZERO}, 0')
        a(f's_lshr_b32 s{sHLP}, s{sWAVE}, 2'); a(f's_and_b32 s{sWAVE}, s{sWAVE}, 3')
        a(f'v_mov_b32 v4, {CR+2048}')
        a(f'ds_write_b32 v4, v{vZERO}')
        a('s_waitcnt lgkmcnt(0)')
        a('s_barrier')
        P = lambda i: KA + 2*i
        def mk(b, p, n):
            a(f's_mov_b32 s{b}, s{P(p)}'); a(f's_and_b32 s{b+1}, s{P(p)+1}, 0xffff'); a(f's_mov_b32 s{b+2}, {n:#x}'); a(f's_mov_b32 s{b+3}, 0x20000')
        mk(S_DBG, 8, 256)
        Ls = self.lab('noatom')
        a(f's_or_b32 s{sT0}, s{sHLP}, s{sWAVE}'); a(f's_cmp_lg_u32 s{sT0}, 0')
        snap = a.cond_skip(f's_cbranch_scc1 {Ls}')
        a(f's_and_b32 s{sT0}, s{sXCC}, 3'); a(f's_lshl_b32 s{sT0}, s{sT0}, 6'); a(f's_lshr_b32 s{sT1}, s{sXCC}, 2'); a(f's_lshl_b32 s{sT1}, s{sT1}, 2')
        a(f's_add_u32 s{sT0}, s{sT0}, s{sT1}')
        a(f's_add_u32 s{sT2}, s{P(8)}, s{sT0}'); a(f's_addc_u32 s{sT3}, s{P(8)+1}, 0')
        a(f's_mov_b32 s{sT4}, 1')
        a(f's_atomic_add s{sT4}, s[{sT2}:{sT3}], 0 glc')
        a('s_waitcnt lgkmcnt(0)')
        a(f's_add_u32 s{sT4}, s{sT4}, 1')
        a(f'v_mov_b32 v{TMP}, s{sT4}'); a(f'v_mov_b32 v{TMP+1}, {CR+2048}')
        a(f'ds_write_b32 v{TMP+1}, v{TMP}')
        a('s_waitcnt lgkmcnt(0)')
        a.cond_join(Ls, snap)
        mk(S_WQ, 1, 512*1536*2); mk(S_WO, 2, 512*512*2); mk(S_W1, 4, 512*1792*2); mk(S_W2, 6, 1792*512*2)
        mk(S_MISC, 0, 2048*512*2)
        a(f's_mul_i32 s{sT0}, s{sXCC}, {XSTRIDE:#x}')
        a(f's_add_u32 s{S_WS}, s{P(9)}, s{sT0}'); a(f's_addc_u32 s{S_WS+1}, s{P(9)+1}, 0'); a(f's_and_b32 s{S_WS+1}, s{S_WS+1}, 0xffff')
        a(f's_mov_b32 s{S_WS+2}, {XSTRIDE:#x}'); a(f's_mov_b32 s{S_WS+3}, 0x20000')
        a(f's_add_u32 s{sT0}, s{sT0}, {XSTRIDE:#x}')
        a(f's_add_u32 s{S_RM}, s{P(9)}, s{sT0}'); a(f's_addc_u32 s{S_RM+1}, s{P(9)+1}, 0'); a(f's_and_b32 s{S_RM+1}, s{S_RM+1}, 0xffff')
        a(f's_mov_b32 s{S_RM+2}, {XSTRIDE:#x}'); a(f's_mov_b32 s{S_RM+3}, 0x20000')
        a(f's_cmp_lg_u32 s{sHLP}, 0'); a('s_cbranch_scc1 L_helper')
        self.hsnap = a.snapshot()
        a('s_setprio 2')
        a(f's_mov_b32 s{S_WQ}, s{P(0)}'); a(f's_and_b32 s{S_WQ+1}, s{P(0)+1}, 0xffff'); a(f's_mov_b32 s{S_WQ+2}, {2048*512*2:#x}')
        self.role()
        a(f's_mov_b32 s{sONES}, 0x3f803f80'); a(f's_mov_b32 s{sEPS}, {f2u(1e-5):#x}')
        self.stamp('role')
    def lane_consts(self):
        a = self.a; T = XW
        p, g, pr, pc = T+1, T+2, T+3, T+4
        a(f'v_and_b32 v{p}, 15, v{vLANE}'); a(f'v_lshrrev_b32 v{g}, 4, v{vLANE}')
        a(f'v_lshrrev_b32 v{pr}, 2, v{p}'); a(f'v_and_b32 v{pc}, 3, v{p}')
        r = T+5
        a(f'v_lshlrev_b32 v{r}, 2, v{g}'); a(f'v_add_u32 v{r}, v{r}, v{pr}')
        c8 = T+6
        a(f'v_lshlrev_b32 v{c8}, 3, v{pc}')
        t0, t1 = T+7, T+8
        a(f'v_and_b32 v{t1}, 1, v{g}'); a(f'v_lshlrev_b32 v{t1}, 5, v{t1}')
        a(f'v_lshlrev_b32 v{t0}, 6, v{r}'); a(f'v_add_u32 v{t0}, v{t0}, v{c8}')
        a(f'v_add_u32 v{vR1}, v{t0}, v{t1}'); a(f'v_xor_b32 v{vR1+1}, 32, v{vR1}')
        a(f'v_lshrrev_b32 v{t1}, 3, v{p}'); a(f'v_lshlrev_b32 v{T+9}, 1, v{g}'); a(f'v_add_u32 v{t1}, v{t1}, v{T+9}')
        a(f'v_and_b32 v{t1}, 3, v{t1}'); a(f'v_lshlrev_b32 v{t1}, 5, v{t1}')
        a(f'v_lshlrev_b32 v{t0}, 7, v{r}'); a(f'v_add_u32 v{t0}, v{t0}, v{c8}')
        for ct in range(4):
            a(f'v_xor_b32 v{T+9}, {ct*32}, v{t1}'); a(f'v_add_u32 v{vPAT+ct}, v{T+9}, v{t0}')
            a(f'v_add_u32 v{vR2+ct}, {B2}, v{vPAT+ct}')
        a(f'v_mul_u32_u24 v{t0}, 224, v{r}'); a(f'v_add_u32 v{vR3}, v{t0}, v{c8}')
        a(f's_mul_i32 s{sB4L}, s{sWAVE}, {B4LS}'); a(f's_mul_i32 s{sB4H}, s{sWAVE}, {B4HS}'); a(f's_add_u32 s{sB4H}, s{sB4H}, {B4HI}')
        a(f's_lshr_b32 s{sT0}, s{sCB}, 1'); a(f's_lshl_b32 s{sT0}, s{sT0}, 8'); a(f's_and_b32 s{sT1}, s{sCB}, 1'); a(f's_lshl_b32 s{sT1}, s{sT1}, 3')
        a(f's_add_u32 s{sT0}, s{sT0}, s{sT1}')
        a(f'v_lshlrev_b32 v{t0}, 4, v{p}'); a(f'v_lshrrev_b32 v{t1}, 5, v{vLANE}'); a(f'v_lshlrev_b32 v{t1}, 2, v{t1}')
        a(f'v_add_u32 v{t0}, v{t0}, v{t1}'); a(f'v_add_u32 v{vSTO}, s{sT0}, v{t0}')
        a(f'v_and_b32 v{t1}, 1, v{g}'); a(f'v_mul_u32_u24 v{t1}, 24, v{t1}')
        a(f'v_lshlrev_b32 v{t0}, 3, v{g}'); a(f'v_add_u32 v{t0}, v{t0}, v{t1}')
        a(f'v_lshlrev_b32 v{t1}, 10, v{p}'); a(f'v_add_u32 v{t0}, v{t0}, v{t1}')
        a(f's_lshl_b32 s{sT0}, s{sCB}, 7'); a(f'v_add_u32 v{vOUT}, s{sT0}, v{t0}')
        NEG = f2u(-1e30)
        a(f's_mov_b32 s{sT2}, {NEG:#x}'); a(f'v_mov_b32 v{T+10}, s{sT2}')
        a(f's_or_b32 s{sT0}, s{sXCC}, s{sGRP}'); a(f's_or_b32 s{sFIRST}, s{sT0}, s{sWAVE}')
        for r_ in range(4):
            a(f'v_lshlrev_b32 v{t0}, 2, v{g}'); a(f'v_add_u32 v{t0}, {r_}, v{t0}')
            a(f'v_sub_u32 v{t1}, v{p}, v{t0}')
            a(f'v_and_b32 v{T+9}, 1, v{t1}')
            a(f'v_cmp_eq_u32 s[{sT4}:{sT4+1}], 0, v{T+9}')
            a(f'v_cmp_le_i32 vcc, 0, v{t1}')
            a(f's_and_b64 vcc, vcc, s[{sT4}:{sT4+1}]')
            a(f'v_cndmask_b32 v{vMC+r_}, v{T+10}, v{vZERO}, vcc')
            a(f'v_cmp_ge_i32 vcc, -2, v{t1}')
            a(f's_and_b64 vcc, vcc, s[{sT4}:{sT4+1}]')
            a(f'v_cndmask_b32 v{vMP+r_}, v{T+10}, v{vZERO}, vcc')
            a(f's_cmp_eq_u32 s{sFIRST}, 0')
            a(f's_cselect_b64 vcc, 0, vcc')
            a(f'v_cndmask_b32 v{vMF+r_}, v{T+10}, v{vZERO}, vcc')
    def poll_addr_x_phase0(self):
        a = self.a; T = TMP
        a(f's_lshl_b32 s{sT0}, s{sGRP}, 3'); a(f's_lshl_b32 s{sT1}, s{sWAVE}, 1'); a(f's_add_u32 s{sT0}, s{sT0}, s{sT1}'); a(f's_lshl_b32 s{sT0}, s{sT0}, 3')
        a(f's_cmp_eq_u32 s{sGRP}, 0'); a(f's_cselect_b32 s{sT1}, 0, 56'); a(f's_cselect_b32 s{sT2}, 15, 7')
        a(f'v_and_b32 v{T+1}, 15, v{vLANE}'); a(f'v_add_u32 v{T+1}, s{sT0}, v{T+1}')
        a(f'v_and_b32 v{T+2}, s{sT2}, v{vLANE}'); a(f'v_add_u32 v{T+2}, s{sT1}, v{T+2}')
        a(f'v_cmp_gt_u32 vcc, 32, v{vLANE}')
        a(f'v_cndmask_b32 v{T+1}, v{T+2}, v{T+1}, vcc')
        a(f'v_lshlrev_b32 v{vPOLL}, 2, v{T+1}'); a(f'v_add_u32 v{vPOLL}, 512, v{vPOLL}')
    def poll_addr_tiles_from_cbs(self, with_halo):
        a = self.a; T = TMP
        a(f's_lshl_b32 s{sT0}, s{sGRP}, 3'); a(f's_lshl_b32 s{sT1}, s{sWAVE}, 1'); a(f's_add_u32 s{sT0}, s{sT0}, s{sT1}')
        a(f's_lshr_b32 s{sT1}, s{sT0}, 2'); a(f's_lshl_b32 s{sT1}, s{sT1}, 3')
        a(f's_and_b32 s{sT0}, s{sT0}, 3')
        a(f's_lshl_b32 s{sT1}, s{sT1}, 2'); a(f's_add_u32 s{sT0}, s{sT0}, s{sT1}')
        a(f'v_and_b32 v{T+1}, 7, v{vLANE}'); a(f'v_lshlrev_b32 v{T+1}, 2, v{T+1}')
        a(f'v_bfe_u32 v{T+2}, v{vLANE}, 3, 1'); a(f'v_add_u32 v{T+1}, v{T+1}, v{T+2}'); a(f'v_add_u32 v{T+1}, s{sT0}, v{T+1}')
        if with_halo:
            a(f'v_and_b32 v{T+2}, 7, v{vLANE}'); a(f'v_lshlrev_b32 v{T+2}, 2, v{T+2}'); a(f'v_add_u32 v{T+2}, 35, v{T+2}')
            a(f'v_cmp_gt_u32 vcc, 32, v{vLANE}')
            a(f's_cmp_eq_u32 s{sGRP}, 0'); a(f's_cselect_b64 vcc, -1, vcc')
            a(f'v_cndmask_b32 v{T+1}, v{T+2}, v{T+1}, vcc')
        a(f'v_lshlrev_b32 v{vPOLL}, 2, v{T+1}')
    def stream(self, mf, reads_after, fillers, pre_waits, hooks={}):
        a = self.a; fill = {}
        for gap, ins in fillers: fill.setdefault(gap, []).append(ins)
        for i, m in enumerate(mf):
            if i in hooks: hooks[i]()
            if i in pre_waits: a.wait_regs(pre_waits[i])
            a(m)
            for r in reads_after.get(i, []): self.emit(r)
            for f in fill.get(i, []): self.emit(f)
        assert not [g for g in fill if g >= len(mf)]
    @staticmethod
    def spread(L, g0, g1):
        n = len(L); span = g1 - g0
        return [(g0 + (i * span) // n, x) for i, x in enumerate(L)]
    @staticmethod
    def xplan(nsteps, nslots, init, per_step):
        nxt = init; plan = {}
        for s in range(nsteps):
            L = []
            while nxt < nsteps and nxt <= s + nslots - 1 and len(L) < per_step(s):
                L.append(nxt); nxt += 1
            plan[s] = L
        assert nxt == nsteps
        return list(range(init)), plan
    def p1_main(self, it):
        a = self.a; T = TMP
        NS = 10; XH = 16
        sX0, sX1, sH, sS = sT0, sT1, sT2, sXO+0
        sHS = sC2
        SQ = [T+4, T+8, T+12]; R1H = T+16
        RS = [T+20, T+22, T+2]
        if it == 0: self.poll_addr_x_phase0()
        else: self.poll_addr_tiles_from_cbs(True)
        a(f's_lshl_b32 s{sT4}, s{sGRP}, 3'); a(f's_lshl_b32 s{sT5}, s{sWAVE}, 1'); a(f's_add_u32 s{sT4}, s{sT4}, s{sT5}')
        a(f's_lshl_b32 s{sS}, s{sT4}, 10'); a(f's_add_u32 s{sS}, s{sS}, {STB:#x}')
        a(f's_mul_i32 s{sHS}, s{sGRP}, {HSZ:#x}'); a(f's_add_u32 s{sHS}, s{sHS}, {HSET + (DELTA if it else 0):#x}')
        if it == 1:
            a(f's_lshl_b32 s{sX0}, s{sT4}, 14'); a(f's_add_u32 s{sX0}, s{sX0}, {XB:#x}'); a(f's_add_u32 s{sX1}, s{sX0}, 16384')
            a(f's_lshl_b32 s{sT5}, s{sWAVE}, 12'); a(f's_add_u32 s{sH}, s{sHS}, s{sT5}')
        a(f's_add_u32 s{sHS}, s{sHS}, {HSTAT:#x}')
        a(f's_or_b32 s{sT5}, s{sXCC}, s{sGRP}'); a(f's_cmp_eq_u32 s{sT5}, 0')
        if it == 1:
            a(f's_cselect_b32 s{sH}, 0x7ff00000, s{sH}'); a(f's_cselect_b32 s{sHS}, 0x7ff00000, s{sHS}')
        else:
            a(f's_lshl_b32 s{sX0}, s{sXCC}, 4'); a(f's_add_u32 s{sX0}, s{sX0}, s{sT4}'); a(f's_lshl_b32 s{sX0}, s{sX0}, 14'); a(f's_add_u32 s{sX1}, s{sX0}, 16384')
            a(f's_lshl_b32 s{sH}, s{sXCC}, 1'); a(f's_add_u32 s{sH}, s{sH}, s{sGRP}'); a(f's_lshl_b32 s{sH}, s{sH}, 17'); a(f's_sub_u32 s{sH}, s{sH}, 16384')
            a(f's_lshl_b32 s{sT4}, s{sWAVE}, 8'); a(f's_add_u32 s{sH}, s{sH}, s{sT4}')
            a(f's_cmp_eq_u32 s{sT5}, 0'); a(f's_cselect_b32 s{sH}, 0x7ff00000, s{sH}')
        a(f'v_add_u32 v{R1H}, {8*6144}, v{vR1}'); a(f'v_add_u32 v{R1H+1}, {8*6144}, v{vR1+1}')
        def wread(s, f):
            mat, hh = f >> 1, f & 1
            base = (R1H if s >= 8 else vR1) + hh; so = (s % 8)*6144 + mat*2048
            return [f'ds_read_b64_tr_b16 {v(WF+4*f+2*h,2)}, v{base} offset:{so+h*1024}' for h in range(2)]
        fl = []; hk = {}
        if it == 1:
            self.poll(6 if False else None, target_imm=6)
            self.stamp('p1_ready')
            def xload(s):
                L = []
                if s % 4 == 0 and s > 0:
                    L += [f's_add_u32 s{sX0}, s{sX0}, 4096', f's_add_u32 s{sX1}, s{sX1}, 4096']
                b = XW + 8*(s % NS)
                L += [f'buffer_load_dwordx4 {v(b,4)}, v{vL16}, {srd(S_WS)}, s{sX0} offen offset:{(s%4)*1024}{XMOD}',
                      f'buffer_load_dwordx4 {v(b+4,4)}, v{vL16}, {srd(S_WS)}, s{sX1} offen offset:{(s%4)*1024}{XMOD}']
                return L
            init, plan = self.xplan(16, NS, 3, lambda s: 1 + (s & 1))
            for s in init: self.emit_all(xload(s))
            xb_of = lambda s: XW + 8*(s % NS)
            for s in range(16):
                x = []
                for n in plan[s]: x += xload(n)
                if x: fl += self.spread(x, 12*s+1, 12*s+11)
            last = max(s for s in plan if plan[s])
        else:
            XD = XW+16
            XA_ = XW+18
            t0, t1 = XW+22, XW+23
            a(f's_mul_i32 s{sT3}, s{sWAVE}, 15360'); a(f's_add_u32 s60, s{sT3}, {B2}')
            for hf in range(2):
                a(f'v_lshrrev_b32 v{t0}, 3, v{vLANE}'); a(f'v_add_u32 v{t0}, {8*hf}, v{t0}')
                a(f'v_lshrrev_b32 v{t1}, 1, v{t0}'); a(f'v_lshlrev_b32 v{t0}, 10, v{t0}')
                a(f'v_xor_b32 v{t1}, v{t1}, v{vLANE}'); a(f'v_and_b32 v{t1}, 7, v{t1}'); a(f'v_lshlrev_b32 v{t1}, 4, v{t1}')
                a(f'v_add_u32 v{XD+hf}, v{t0}, v{t1}')
            a(f'v_and_b32 v{t0}, 15, v{vLANE}'); a(f'v_lshrrev_b32 v{t1}, 1, v{t0}'); a(f'v_lshrrev_b32 v{XA_}, 5, v{vLANE}'); a(f'v_xor_b32 v{t1}, v{t1}, v{XA_}')
            a(f'v_and_b32 v{t1}, 7, v{t1}'); a(f'v_lshlrev_b32 v{t1}, 4, v{t1}')
            a(f'v_and_b32 v{XA_}, 7, v{t0}'); a(f'v_lshlrev_b32 v{XA_}, 7, v{XA_}'); a(f'v_add_u32 v{t1}, v{t1}, v{XA_}')
            a(f'v_lshrrev_b32 v{t0}, 3, v{t0}'); a(f'v_lshlrev_b32 v{t0}, 10, v{t0}'); a(f'v_add_u32 v{t1}, v{t1}, v{t0}')
            a(f'v_bfe_u32 v{t0}, v{vLANE}, 4, 1'); a(f'v_lshlrev_b32 v{t0}, 3, v{t0}'); a(f'v_add_u32 v{t1}, v{t1}, v{t0}')
            a(f'v_add_u32 v{XA_}, s60, v{t1}')
            a(f'v_xor_b32 v{XA_+1}, 32, v{XA_}'); a(f'v_xor_b32 v{XA_+2}, 64, v{XA_}'); a(f'v_xor_b32 v{XA_+3}, 96, v{XA_}')
            def xdma(pr):
                L = []
                for t in range(2):
                    for hf in range(2):
                        L += [f's_add_u32 m0, s60, {((pr % 3)*4096 + t*2048 + hf*1024 - pr*128) & 0xffffffff}',
                              (f'buffer_load_dwordx4 v{XD+hf}, {srd(S_MISC)}, s{sX0 if t == 0 else sX1} offen offset:{pr*128} lds', f'XD{pr}')]
                return L
            def xread(s):
                L = []; pr, kk = divmod(s, 2)
                for t in range(2):
                    b = XW + 8*(s & 1) + 4*t; o = (pr % 3)*4096 + t*2048
                    L += [f'ds_read_b64 {v(b,2)}, v{XA_+2*kk} offset:{o}', f'ds_read_b64 {v(b+2,2)}, v{XA_+2*kk+1} offset:{o}']
                return L
            for pr in range(3): self.emit_all(xdma(pr))
            hd = []
            for pr in range(2):
                for hf in range(2):
                    hd += [f's_add_u32 m0, s60, {8192 + pr*2048 + hf*1024 - pr*128}',
                           (f'buffer_load_dwordx4 v{XD+hf}, {srd(S_MISC)}, s{sH} offen offset:{pr*128} lds', 'XH')]
            fl += self.spread(hd, 12*11+3, 12*11+12)
            self.stamp('p1_ready')
            a.wait_vm_tag('XD0')
            self.emit_all(xread(0))
            xb_of = lambda s: XW + 8*(s & 1)
            for s in range(15):
                g0 = 12*s
                if s & 1: hk[g0+2] = (lambda s=s: a.wait_vm_tag(f'XD{(s+1)//2}'))
                fl += self.spread(xread(s+1), g0+2, g0+6)
                if (s & 1) and (s//2 + 3) < 8: fl += self.spread(xdma(s//2 + 3), g0+3, g0+12)
            last = 11
        self.barrier('bB1_0', drain=False)
        for f in range(6): self.emit_all(wread(0, f))
        mf = []; ra = {}; pw = {}
        for s in range(16):
            xb = xb_of(s)
            for f in range(6):
                for t in range(2):
                    acc = v(ACC+8*f+4*t, 4); X = v(xb+4*t, 4); W = v(WF+4*f, 4); C = acc if s else '0'
                    mf.append(f'v_mfma_f32_16x16x32_bf16 {acc}, {W}, {X}, {C}' if f < 4 else f'v_mfma_f32_16x16x32_bf16 {acc}, {X}, {W}, {C}')
                if s < 15:
                    r0, r1 = wread(s+1, f)
                    ra.setdefault(len(mf)-1, []).append(r0); ra.setdefault(len(mf), []).append(r1)
        def chain(gi, fn):
            old = hk.get(gi)
            hk[gi] = (lambda: (old(), fn())) if old else fn
        if it == 0:
            for c in range(1, 4): chain(12*(4*c-1), lambda c=c: self.barrier(f'bB1_{c}', drain=False))
        st = [f'buffer_load_dwordx4 {v(SQ[0],4)}, v{vL16}, {srd(S_WS)}, s{sS} offen sc1',
              f'buffer_load_dwordx4 {v(SQ[1],4)}, v{vL16}, {srd(S_WS)}, s{sS} offen offset:1024 sc1',
              f'buffer_load_dwordx4 {v(SQ[2],4)}, v{vL16}, {srd(S_WS)}, s{sHS} offen sc1']
        if it == 1:
            fl += self.spread(st[:2], 12*(last+1)+1, 12*(last+1)+8); HE = last + 2
            def halo():
                Lr = self.lab('norem')
                a(f's_cmp_lg_u32 s{sGRP}, 0'); snap = a.cond_skip(f's_cbranch_scc1 {Lr}')
                a(f's_cmp_eq_u32 s{sXCC}, 0'); a(f's_cbranch_scc1 {Lr}')
                a(f'v_and_b32 v{vPOLL}, 7, v{vLANE}'); a(f'v_lshlrev_b32 v{vPOLL}, 2, v{vPOLL}'); a(f'v_add_u32 v{vPOLL}, {HFLAG}, v{vPOLL}')
                lg = list(a.lgq)
                self.poll(None, keep_lg=True, target_imm=1)
                a.lgq = lg
                a.cond_join(Lr, (snap[0], snap[1], snap[2], a.nvm, a.nlg))
                for i in range(4): a(f'buffer_load_dwordx4 {v(XH+4*i,4)}, v{vL16}, {srd(S_WS)}, s{sH} offen offset:{i*1024} sc1')
                a(st[2])
                self.barrier('bX1', drain=False)
            chain(12*HE, halo)
            fin0 = HE + 1
        else:
            HE = opt('he0', 13)
            def halo_rd():
                a.wait_vm_tag('XH')
                for i in range(4):
                    pr, kk = divmod(i, 2)
                    a(f'ds_read_b64 {v(XH+4*i,2)}, v{XA_+2*kk} offset:{8192+pr*2048}'); a(f'ds_read_b64 {v(XH+4*i+2,2)}, v{XA_+2*kk+1} offset:{8192+pr*2048}')
            chain(12*(HE-2), lambda: a(f'buffer_load_dword v{T+1}, v{vPOLL}, {srd(S_WS)}, 0 offen sc1'))
            def stats0():
                Lr = self.lab('p0rdy')
                a(f'v_cmp_gt_u32 vcc, 1, v{T+1}'); snap = a.cond_skip(f's_cbranch_vccz {Lr}')
                lg = list(a.lgq)
                self.poll(None, keep_lg=True, target_imm=1)
                a.lgq = lg
                a.cond_join(Lr, (snap[0], snap[1], snap[2], a.nvm, a.nlg))
                for x in st: a(x)
                self.barrier('bX1', drain=False)
            chain(12*HE, stats0)
            fin0 = HE + 2
        L = []
        for t in range(3): self.stats_finalize(SQ[t], RS[t], RS[t]+1, L.append)
        fl += self.spread(L, 12*fin0, 12*15+10)
        f0 = opt('f0', -1)
        for gi, fi in (((1, 0), (48, 1), (95, 2), (144, 3), (191, 4)) if f0 < 0 else tuple((12*(f0+k)+1, k) for k in range(5))):
            chain(gi, (lambda fi=fi: self.fstamp('p1', fi)))
        self.stream(mf, ra, fl, pw, hooks=hk)
        if it == 0: halo_rd()
        HA = T+18
        a(f's_mul_i32 s{sT4}, s{sWAVE}, {4*6144}')
        a(f'v_add_u32 v{HA}, s{sT4}, v{vR1}'); a(f'v_add_u32 v{HA+1}, s{sT4}, v{vR1+1}')
        def hread(i, pc, dst):
            mat, hh = 1 + (pc >> 1), pc & 1
            return [f'ds_read_b64_tr_b16 {v(dst+2*h,2)}, v{HA+hh} offset:{i*6144+mat*2048+h*1024}' for h in range(2)]
        for i in range(2):
            for pc in range(4): self.emit_all(hread(i, pc, WF + 16*i + 4*pc))
        for i in range(4):
            b = WF + 16*(i & 1)
            for pc in range(4):
                acc = v(ACC+48+4*pc, 4); X = v(XH+4*i, 4); W = v(b+4*pc, 4); C = acc if i else '0'
                a(f'v_mfma_f32_16x16x32_bf16 {acc}, {W}, {X}, {C}' if pc < 2 else f'v_mfma_f32_16x16x32_bf16 {acc}, {X}, {W}, {C}')
                if i + 2 < 4: self.emit_all(hread(i+2, pc, b+4*pc))
        self.stamp('p1_main'); self.fstamp_store('p1', 5)
        if it == 0:
            P7 = KA + 14
            a(f's_mov_b32 s{S_MISC}, s{P7}'); a(f's_and_b32 s{S_MISC+1}, s{P7+1}, 0xffff'); a(f's_mov_b32 s{S_MISC+2}, {2048*512*2}'); a(f's_mov_b32 s{S_MISC+3}, 0x20000')
        a.wait_all()
        a('s_nop 7')
    def p1_epi(self):
        a = self.a; T = TMP
        XH = 16; SQ = [T+4, T+8, T+12]; RS = [T+20, T+22, T+2]
        E = XW
        SA = E+8
        a(f'v_and_b32 v{SA}, 15, v{vLANE}'); a(f'v_lshlrev_b32 v{SA}, 2, v{SA}')
        a(f'v_bfe_u32 v{SA+1}, v{vLANE}, 4, 1'); a(f'v_lshlrev_b32 v{SA+1}, 6, v{SA+1}'); a(f'v_add_u32 v{SA}, v{SA}, v{SA+1}')
        a(f's_lshl_b32 s{sT4}, s{sWAVE}, 8'); a(f's_add_u32 s{sT4}, s{sT4}, {STS}'); a(f'v_add_u32 v{SA}, s{sT4}, v{SA}')
        a(f'v_and_b32 v{SA+1}, 16, v{vLANE}'); a(f'v_cmp_eq_u32 vcc, 0, v{SA+1}')
        RA = E+9
        a(f'v_lshrrev_b32 v{RA}, 4, v{vLANE}'); a(f'v_lshlrev_b32 v{RA}, 4, v{RA}'); a(f'v_add_u32 v{RA}, s{sT4}, v{RA}')
        for t in range(2):
            a(f'v_cndmask_b32 v{SA+2}, v{RS[t]+1}, v{RS[t]}, vcc')
            a(f'ds_write_b32 v{SA}, v{SA+2} offset:{t*128}')
        a(f'v_cndmask_b32 v{SA+2}, v{RS[2]+1}, v{RS[2]}, vcc')
        a(f'v_subrev_u32 v{SA+3}, s{sT4}, v{SA}'); a(f'v_add_u32 v{SA+3}, {STS+1024}, v{SA+3}')
        a(f'ds_write_b32 v{SA+3}, v{SA+2}')
        VS = WF
        for t in range(2):
            a(f'ds_read_b128 {v(VS+8*t,4)}, v{RA} offset:{t*128}'); a(f'ds_read_b128 {v(VS+8*t+4,4)}, v{RA} offset:{t*128+64}')
        a(f'v_lshrrev_b32 v{E+60}, 4, v{vLANE}'); a(f'v_lshlrev_b32 v{E+60}, 4, v{E+60}'); a(f'v_add_u32 v{E+60}, {CR+1024}, v{E+60}')
        a(f'v_and_b32 v{E+61}, 15, v{vLANE}'); a(f'v_lshlrev_b32 v{E+61}, 2, v{E+61}'); a(f'v_add_u32 v{E+61}, {CR+1024+256}, v{E+61}')
        a(f's_lshl_b32 s{sT4}, s{sWAVE}, 12'); a(f's_add_u32 s{sT4}, s{sT4}, {HPX}'); a(f'v_add_u32 v{E+62}, s{sT4}, v{vL16}')
        self.barrier('b2', drain=False)
        if opt('xs', 0): self.stamp('p1_b2')
        for pc in range(4): a(f'ds_write_b128 v{E+62}, {v(ACC+48+4*pc,4)} offset:{pc*1024}')
        for hh in range(2):
            a(f'ds_read_b128 {v(vCSK+4*hh,4)}, v{E+60} offset:{128+hh*64}')
            a(f'ds_read_b32 v{vCSV+hh}, v{E+61} offset:{hh*64}')
            a(f'ds_read_b128 {v(vCSQ+4*hh,4)}, v{E+60} offset:{hh*64}')
        self.barrier('b2b')
        QF = WF+16; KS = E+10; U = WF+24
        k = 0
        def norm_T(accb, cs, t, dst):
            rs = RS[t]
            for pz in range(2):
                u = U + 2*pz + 4*(k & 1)
                a(f'v_pk_mul_f32 {v(u,2)}, {v(cs+2*pz,2)}, {v(rs,2)} op_sel:[0,1] op_sel_hi:[1,1]')
            for pz in range(2):
                u = U + 2*pz + 4*(k & 1)
                a(f'v_pk_fma_f32 {v(u,2)}, {v(accb+2*pz,2)}, {v(rs,2)}, {v(u,2)} op_sel_hi:[1,0,1] neg_lo:[0,0,1] neg_hi:[0,0,1]')
            for pz in range(2):
                u = U + 2*pz + 4*(k & 1)
                a(f'v_cvt_pk_bf16_f32 v{dst+pz}, v{u}, v{u+1}')
        for h in range(2):
            for t in range(2):
                norm_T(ACC+8*(2+h)+4*t, vCSK+4*h, t, KS+6*h+2+2*t); k += 1
        VQ = E+24
        for h in range(2):
            for t in range(2):
                accb = ACC+8*(4+h)+4*t
                for pz in range(2):
                    u = U + 2*pz + 4*(k & 1)
                    a(f'v_pk_mul_f32 {v(u,2)}, {v(VS+8*t+4+2*pz,2)}, {v(vCSV,2)} op_sel:[0,{h}] op_sel_hi:[1,{h}]')
                for pz in range(2):
                    u = U + 2*pz + 4*(k & 1)
                    a(f'v_pk_fma_f32 {v(u,2)}, {v(accb+2*pz,2)}, {v(VS+8*t+2*pz,2)}, {v(u,2)} neg_lo:[0,0,1] neg_hi:[0,0,1]')
                for pz in range(2):
                    u = U + 2*pz + 4*(k & 1)
                    a(f'v_cvt_pk_bf16_f32 v{VQ+6*h+2+2*t+pz}, v{u}, v{u+1}')
                k += 1
        EA = E+8
        a(f's_lshl_b32 s{sT4}, s{sWAVE}, 11'); a(f's_add_u32 s{sT4}, s{sT4}, {KVX}')
        a(f'v_lshlrev_b32 v{EA}, 3, v{vLANE}'); a(f'v_add_u32 v{EA}, s{sT4}, v{EA}')
        Lw3 = self.lab('w3')
        a(f's_cmp_eq_u32 s{sWAVE}, 3'); snap = a.cond_skip(f's_cbranch_scc1 {Lw3}')
        for h in range(2):
            a(f'ds_write_b64 v{EA}, {v(KS+6*h+4,2)} offset:{2048+h*512}'); a(f'ds_write_b64 v{EA}, {v(VQ+6*h+4,2)} offset:{2048+1024+h*512}')
        a.cond_join(Lw3, (snap[0], snap[1], snap[2], a.nvm, a.nlg))
        for h in range(2):
            for t in range(2):
                norm_T(ACC+8*h+4*t, vCSQ+4*h, t, QF+4*h+2*t); k += 1
        if opt('xs', 0): self.stamp('p1_preb3')
        a('s_waitcnt lgkmcnt(0)')
        self.barrier('b3')
        if opt('xs', 0): self.stamp('p1_b3')
        for h in range(2):
            a(f'ds_read_b64 {v(KS+6*h,2)}, v{EA} offset:{h*512}'); a(f'ds_read_b64 {v(VQ+6*h,2)}, v{EA} offset:{1024+h*512}')
        self.stamp('p1_exch')
        SB = ACC+16
        a(f's_mov_b32 s{sC1}, {f2u(0.25*LOG2E):#x}')
        for t in range(2):
            for h in range(2):
                b = SB+16*t+8*h; Q = v(QF+4*h+2*t, 2)
                a(f'v_mfma_f32_16x16x16_bf16 {v(b,4)}, {v(KS+6*h+2*t,2)}, {Q}, 0')
                a(f'v_mfma_f32_16x16x16_bf16 {v(b+4,4)}, {v(KS+6*h+2*t+2,2)}, {Q}, 0')
        MX = WF
        for t in range(2):
            mp = vMF if t == 0 else vMP
            for h in range(2):
                b = SB+16*t+8*h
                for pz in range(2):
                    a(f'v_pk_fma_f32 {v(b+2*pz,2)}, {v(b+2*pz,2)}, s[{sC1}:{sC1+1}], {v(mp+2*pz,2)} op_sel_hi:[1,0,1]')
                    a(f'v_pk_fma_f32 {v(b+4+2*pz,2)}, {v(b+4+2*pz,2)}, s[{sC1}:{sC1+1}], {v(vMC+2*pz,2)} op_sel_hi:[1,0,1]')
        for step in range(4):
            for t in range(2):
                for h in range(2):
                    b = SB+16*t+8*h; m = MX+2*t+h
                    if step == 0: a(f'v_max3_f32 v{m}, v{b}, v{b+1}, v{b+2}')
                    elif step == 1: a(f'v_max3_f32 v{m}, v{m}, v{b+3}, v{b+4}')
                    elif step == 2: a(f'v_max3_f32 v{m}, v{m}, v{b+5}, v{b+6}')
                    else: a(f'v_max_f32 v{m}, v{m}, v{b+7}')
        def red2(op, pairs):
            for x, y, u in pairs: a(f'v_permlane32_swap_b32 v{x}, v{y}')
            for x, y, u in pairs: a(f'{op} v{x}, v{x}, v{y}')
            for x, y, u in pairs: a(f'v_mov_b32 v{u}, v{x}')
            for x, y, u in pairs: a(f'v_permlane16_swap_b32 v{u}, v{x}')
            for x, y, u in pairs: a(f'{op} v{x}, v{x}, v{u}')
            for x, y, u in pairs: a(f'v_mov_b32 v{y}, v{x}')
            for x, y, u in pairs: a(f'v_permlane32_swap_b32 v{x}, v{y}')
        red2('v_max_f32', [(MX+2*t, MX+2*t+1, MX+4+t) for t in range(2)])
        SM = WF+8; PK = ACC+48
        for t in range(2):
            for h in range(2):
                b = SB+16*t+8*h; m = MX+2*t
                for pz in range(4):
                    a(f'v_pk_add_f32 {v(b+2*pz,2)}, {v(b+2*pz,2)}, {v(m,2)} op_sel:[0,{h}] op_sel_hi:[1,{h}] neg_lo:[0,1] neg_hi:[0,1]')
                for i in range(8): a(f'v_exp_f32 v{b+i}, v{b+i}')
        OB = E+40
        for t in range(2):
            for h in range(2):
                b = SB+16*t+8*h
                for pz in range(4): a(f'v_cvt_pk_bf16_f32 v{PK+8*t+4*h+pz}, v{b+2*pz}, v{b+2*pz+1}')
            for h in range(2):
                a(f'v_mfma_f32_16x16x32_bf16 {v(OB+8*t+4*h,4)}, {v(VQ+6*h+2*t,4)}, {v(PK+8*t+4*h,4)}, 0')
        for t in range(2):
            for h in range(2):
                b = SB+16*t+8*h; u = WF+12+2*h+8*t
                a(f'v_pk_add_f32 {v(u,2)}, {v(b,2)}, {v(b+2,2)}'); a(f'v_pk_add_f32 {v(u+4,2)}, {v(b+4,2)}, {v(b+6,2)}')
            for h in range(2):
                u = WF+12+2*h+8*t
                a(f'v_pk_add_f32 {v(u,2)}, {v(u,2)}, {v(u+4,2)}')
            for h in range(2):
                u = WF+12+2*h+8*t
                a(f'v_add_f32 v{SM+2*t+h}, v{u}, v{u+1}')
        red2('v_add_f32', [(SM+2*t, SM+2*t+1, MX+4+t) for t in range(2)])
        for i in range(4): a(f'v_rcp_f32 v{SM+i}, v{SM+i}')
        a(f's_lshl_b32 s{sT4}, s{sGRP}, 3'); a(f's_lshl_b32 s{sT5}, s{sWAVE}, 1'); a(f's_add_u32 s{sT4}, s{sT4}, s{sT5}')
        a(f's_mul_i32 s{sT4}, s{sT4}, 57344'); a(f's_lshl_b32 s{sT5}, s{sC}, 10'); a(f's_add_u32 s{sT4}, s{sT4}, s{sT5}')
        a(f's_add_u32 s{sT4}, s{sT4}, {ACT:#x}'); a(f's_add_u32 s{sT5}, s{sT4}, 57344')
        OP = E+56
        for t in range(2):
            for h in range(2):
                b = OB+8*t+4*h
                for pz in range(2):
                    a(f'v_pk_mul_f32 {v(b+2*pz,2)}, {v(b+2*pz,2)}, {v(SM+2*t,2)} op_sel:[0,{h}] op_sel_hi:[1,{h}]')
                for pz in range(2):
                    a(f'v_cvt_pk_bf16_f32 v{OP+4*t+2*h+pz}, v{b+2*pz}, v{b+2*pz+1}')
            a(f'buffer_store_dwordx4 {v(OP+4*t,4)}, v{vL16}, {srd(S_WS)}, s{sT4 if t == 0 else sT5} offen{SMOD}', tag='st')
        if opt('xs', 0): self.stamp('p1_attn')
        a(f's_add_u32 s{sT0}, s{sPH}, 2')
        self.set_flag(sT0)
        self.stamp('p1_done')
    def resid_add(self, accb):
        a = self.a; U = TMP+4
        for i0 in range(0, 8, 2):
            for i in (i0, i0+1):
                u = U + 2*(i & 1)
                a(f'v_lshlrev_b32 v{u}, 16, v{vRP+i}'); a(f'v_and_b32 v{u+1}, 0xffff0000, v{vRP+i}')
            for i in (i0, i0+1):
                u = U + 2*(i & 1)
                a(f'v_pk_add_f32 {v(u,2)}, {v(u,2)}, {v(accb+2*i,2)}')
            for i in (i0, i0+1):
                u = U + 2*(i & 1)
                a(f'v_cvt_pk_bf16_f32 v{vRP+i}, v{u}, v{u+1}')
        a(f's_lshl_b32 s{sT4}, s{sRB}, 2'); a(f's_add_u32 s{sT4}, s{sT4}, s{sWAVE}')
    def resid_store_xf(self):
        a = self.a; T = TMP
        S1, S2, U = T+8, T+9, T+10
        a(f's_lshl_b32 s{sT0}, s{sT4}, 14'); a(f's_lshl_b32 s{sT1}, s{sCB}, 11'); a(f's_add_u32 s{sT0}, s{sT0}, s{sT1}')
        a(f's_add_u32 s{sT0}, s{sT0}, {XB:#x}')
        a(f'buffer_store_dwordx4 {v(vRP,4)}, v{vL16}, {srd(S_WS)}, s{sT0} offen{SMOD}', tag='st')
        a(f'buffer_store_dwordx4 {v(vRP+4,4)}, v{vL16}, {srd(S_WS)}, s{sT0} offen offset:1024{SMOD}', tag='st')
        a(f'v_dot2_f32_bf16 v{S1}, v{vRP}, s{sONES}, 0'); a(f'v_dot2_f32_bf16 v{S2}, v{vRP}, v{vRP}, 0')
        for i in range(1, 8):
            a(f'v_dot2_f32_bf16 v{S1}, v{vRP+i}, s{sONES}, v{S1}'); a(f'v_dot2_f32_bf16 v{S2}, v{vRP+i}, v{vRP+i}, v{S2}')
        a(f'v_permlane32_swap_b32 v{S1}, v{S2}'); a(f'v_add_f32 v{S1}, v{S1}, v{S2}')
        a(f'v_mov_b32 v{U}, v{S1}'); a(f'v_permlane16_swap_b32 v{U}, v{S1}'); a(f'v_add_f32 v{S1}, v{S1}, v{U}')
        a(f's_lshl_b32 s{sT1}, s{sT4}, 10'); a(f's_add_u32 s{sT1}, s{sT1}, {STB:#x}')
        a(f'buffer_store_dword v{S1}, v{vSTO}, {srd(S_WS)}, s{sT1} offen', tag='st')
        return S1
    def p2(self):
        a = self.a; T = TMP
        a(f's_lshl_b32 s{sT0}, s{sRB}, 2'); a(f's_add_u32 s{sT0}, s{sT0}, s{sWAVE}')
        a(f's_and_b32 s{sT1}, s{sT0}, 7'); a(f's_lshr_b32 s{sT1}, s{sT1}, 1')
        a(f's_lshl_b32 s{sT2}, s{sGRP}, 6'); a(f's_add_u32 s{sT1}, s{sT1}, s{sT2}')
        a(f'v_and_b32 v{T+1}, 15, v{vLANE}'); a(f'v_lshlrev_b32 v{T+1}, 2, v{T+1}'); a(f'v_add_u32 v{T+1}, s{sT1}, v{T+1}')
        a(f'v_lshlrev_b32 v{vPOLL}, 2, v{T+1}')
        a(f's_add_u32 s{sT3}, s{sPH}, 2')
        R2X = T+12
        for ct in range(4): a(f'v_add_u32 v{R2X+ct}, {B2X}, v{vPAT+ct}')
        a(f's_lshl_b32 s{sT1}, s{sT0}, 14')
        a(f's_lshl_b32 s{sT2}, s{sCB}, 11'); a(f's_add_u32 s{sT2}, s{sT2}, s{sT1}'); a(f's_add_u32 s{sT2}, s{sT2}, {XB:#x}')
        a(f's_mul_i32 s{sT1}, s{sT0}, 57344'); a(f's_add_u32 s{sT1}, s{sT1}, {ACT:#x}')
        self.poll(sT3)
        self.stamp('p2_ready')
        sX = sT1
        def xl(s):
            L = [f's_add_u32 s{sX}, s{sX}, 4096'] if (s % 4 == 0 and s > 0) else []
            return L + [f'buffer_load_dwordx4 {v(XW+4*s,4)}, v{vL16}, {srd(S_WS)}, s{sX} offen offset:{(s%4)*1024}{XMOD}']
        for s in range(6): self.emit_all(xl(s))
        self.barrier('b4', drain=False)
        NB = 7
        def rd(n):
            s_, ct = divmod(n, 4); b = WF + 4*(n % 8)
            if s_ < 15: return [f'ds_read_b64_tr_b16 {v(b+2*h,2)}, v{vR2+ct} offset:{s_*4096+h*2048}' for h in range(2)]
            return [f'ds_read_b64_tr_b16 {v(b+2*h,2)}, v{R2X+ct} offset:{h*2048}' for h in range(2)]
        for n in range(NB): self.emit_all(rd(n))
        rest = []
        for s in range(6, 16): rest.append(xl(s))
        def resid_load():
            L0 = self.lab('res0'); L1 = self.lab('res1')
            a(f's_cmp_lg_u32 s{sIT}, 0'); snap = a.cond_skip(f's_cbranch_scc1 {L0}')
            a(f'v_and_b32 v{T+16}, 15, v{vLANE}'); a(f'v_lshlrev_b32 v{T+16}, 10, v{T+16}'); a(f'v_lshrrev_b32 v{T+17}, 4, v{vLANE}'); a(f'v_lshlrev_b32 v{T+17}, 3, v{T+17}')
            a(f'v_add_u32 v{T+16}, v{T+16}, v{T+17}')
            a(f's_lshl_b32 s{sT4}, s{sXCC}, 4'); a(f's_add_u32 s{sT4}, s{sT4}, s{sT0}'); a(f's_lshl_b32 s{sT4}, s{sT4}, 14'); a(f's_lshl_b32 s{sT5}, s{sCB}, 7'); a(f's_add_u32 s{sT4}, s{sT4}, s{sT5}')
            for ct in range(4): a(f'buffer_load_dwordx2 {v(vRP+2*ct,2)}, v{T+16}, {srd(S_WQ)}, s{sT4} offen offset:{ct*32}')
            a(f's_branch {L1}')
            a.label(L0)
            a.vmq = list(snap[0])
            a(f'buffer_load_dwordx4 {v(vRP,4)}, v{vL16}, {srd(S_WS)}, s{sT2} offen{XMOD}')
            a(f'buffer_load_dwordx4 {v(vRP+4,4)}, v{vL16}, {srd(S_WS)}, s{sT2} offen offset:1024{XMOD}')
            a.label(L1)
            vm = list(snap[0]) + [({('v', vRP+i) for i in range(8)}, None)]*2
            a.vmq = vm
        rest.append(resid_load)
        for n in range(64):
            s, ct = divmod(n, 4)
            a(f'v_mfma_f32_16x16x32_bf16 {v(ACC+4*ct,4)}, {v(WF+4*(n%8),4)}, {v(XW+4*s,4)}, {v(ACC+4*ct,4) if s else 0}')
            if n + NB < 64: self.emit_all(rd(n+NB))
            if rest and n % 2 == 1:
                x = rest.pop(0)
                if callable(x): x()
                else: self.emit_all(x)
                if not rest: self.barrier('bX2', drain=False)
        self.stamp('p2_main')
        self.barrier('b5')
        if opt('xs', 0): self.stamp('p2_b5')
        self.resid_add(ACC)
        self.resid_store_xf()
        if opt('xs', 0): self.stamp('p2_st')
        a(f's_add_u32 s{sT0}, s{sPH}, 3')
        self.set_flag(sT0)
        self.stamp('p2_done')
    def p3(self):
        a = self.a; T = TMP
        NS = 10
        self.poll_addr_tiles_from_cbs(False); a(f's_add_u32 s{sT3}, s{sPH}, 3')
        R3H = T+12
        a(f'v_add_u32 v{R3H}, {9*7168}, v{vR3}')
        sX0, sX1, sS = sT0, sT1, sT2
        a(f's_lshl_b32 s{sT4}, s{sGRP}, 3'); a(f's_lshl_b32 s{sT5}, s{sWAVE}, 1'); a(f's_add_u32 s{sT4}, s{sT4}, s{sT5}')
        a(f's_lshl_b32 s{sX0}, s{sT4}, 14'); a(f's_add_u32 s{sX0}, s{sX0}, {XB:#x}'); a(f's_add_u32 s{sX1}, s{sX0}, 16384')
        a(f's_lshl_b32 s{sS}, s{sT4}, 10'); a(f's_add_u32 s{sS}, s{sS}, {STB:#x}')
        self.poll(sT3)
        self.stamp('p3_ready')
        SQ = [T+4, T+8]
        def xload(s):
            L = []
            if s % 4 == 0 and s > 0:
                L += [f's_add_u32 s{sX0}, s{sX0}, 4096', f's_add_u32 s{sX1}, s{sX1}, 4096']
            b = XW + 8*(s % NS)
            L += [f'buffer_load_dwordx4 {v(b,4)}, v{vL16}, {srd(S_WS)}, s{sX0} offen offset:{(s%4)*1024}{XMOD}',
                  f'buffer_load_dwordx4 {v(b+4,4)}, v{vL16}, {srd(S_WS)}, s{sX1} offen offset:{(s%4)*1024}{XMOD}']
            return L
        init, plan = self.xplan(16, NS, 3, lambda s: 1 + (s & 1))
        for s in init: self.emit_all(xload(s))
        self.barrier('b6', drain=False)
        def wread(s, ct):
            base = vR3 if s < 9 else R3H; so = (s if s < 9 else s - 9)*7168 + ct*32
            return [f'ds_read_b64_tr_b16 {v(WF+4*ct+2*h,2)}, v{base} offset:{so+h*3584}' for h in range(2)]
        for ct in range(7): self.emit_all(wread(0, ct))
        mf = []; ra = {}; pw = {}; fl = []
        for s in range(16):
            xb = XW + 8*(s % NS)
            for ct in range(7):
                for t in range(2):
                    acc = v(ACC+8*ct+4*t, 4)
                    mf.append(f'v_mfma_f32_16x16x32_bf16 {acc}, {v(WF+4*ct,4)}, {v(xb+4*t,4)}, {acc if s else 0}')
                if s < 15:
                    r0, r1 = wread(s+1, ct)
                    ra.setdefault(len(mf)-1, []).append(r0); ra.setdefault(len(mf), []).append(r1)
            g0 = 14*s
            x = []
            for n in plan[s]: x += xload(n)
            if x: fl += self.spread(x, g0+1, g0+13)
        st = [f'buffer_load_dwordx4 {v(SQ[0],4)}, v{vL16}, {srd(S_WS)}, s{sS} offen{XMOD}',
              f'buffer_load_dwordx4 {v(SQ[1],4)}, v{vL16}, {srd(S_WS)}, s{sS} offen offset:1024{XMOD}']
        last = max(s for s in plan if plan[s]); fl += self.spread(st, 14*(last+1)+1, 14*(last+1)+10)
        RS = [T+16, T+18]
        L = []
        for t in range(2): self.stats_finalize(SQ[t], RS[t], RS[t]+1, L.append)
        L.append(f's_mov_b32 s{sC1}, {f2u(LOG2E):#x}')
        for t in range(2): L += [f'v_mul_f32 v{RS[t]}, s{sC1}, v{RS[t]}', f'v_mul_f32 v{RS[t]+1}, s{sC1}, v{RS[t]+1}']
        fl += self.spread(L, 14*(last+3), 14*15+6)
        self.stream(mf, ra, fl, pw, hooks={1: lambda: self.fstamp('p3', 0), 56: lambda: self.fstamp('p3', 1), 111: lambda: self.fstamp('p3', 2), 14*(last+2): lambda: self.barrier('bX3', drain=False), 168: lambda: self.fstamp('p3', 3), 223: lambda: self.fstamp('p3', 4)})
        self.stamp('p3_main'); self.fstamp_store('p3', 5)
        self.barrier('b7', drain=False)
        if opt('xs', 0): self.stamp('p3_b7')
        CA = T+13
        a(f'v_lshrrev_b32 v{CA}, 4, v{vLANE}'); a(f'v_lshlrev_b32 v{CA}, 4, v{CA}'); a(f'v_add_u32 v{CA}, {CR}, v{CA}')
        CB_ = WF
        def crd(ct):
            a(f'ds_read_b128 {v(CB_+8*(ct&1),4)}, v{CA} offset:{ct*64}'); a(f'ds_read_b128 {v(CB_+8*(ct&1)+4,4)}, v{CA} offset:{512+ct*64}')
        crd(0); crd(1)
        a(f's_lshl_b32 s{sT4}, s{sGRP}, 3'); a(f's_lshl_b32 s{sT5}, s{sWAVE}, 1'); a(f's_add_u32 s{sT4}, s{sT4}, s{sT5}')
        a(f's_mul_i32 s{sT4}, s{sT4}, 57344'); a(f's_add_u32 s{sT4}, s{sT4}, {ACT:#x}')
        a(f's_lshr_b32 s{sT5}, s{sC}, 1'); a(f's_mul_i32 s{sT5}, s{sT5}, 7168'); a(f's_add_u32 s{sT4}, s{sT4}, s{sT5}')
        a(f's_and_b32 s{sT5}, s{sC}, 1')
        a(f's_mul_i32 s{sT0}, s{sT5}, 3072'); a(f's_add_u32 s{sT0}, s{sT0}, s{sT4}')
        a(f's_lshl_b32 s{sT1}, s{sT5}, 3'); a(f's_add_u32 s{sT1}, s{sT1}, s{sT4}'); a(f's_add_u32 s{sT1}, s{sT1}, 6144')
        a(f's_add_u32 s{sT2}, s{sT0}, 57344'); a(f's_add_u32 s{sT3}, s{sT1}, 57344')
        a(f's_mov_b32 s{sC1}, {f2u(-2*LN2):#x}'); a(f's_mov_b32 s{sC2}, {f2u(LN2):#x}')
        LNV = T+20
        a(f'v_mov_b32 v{LNV}, s{sC2}'); a(f'v_mov_b32 v{LNV+1}, s{sC2}')
        OUTQ = lambda t, par: XW + 8*par + 4*t
        SC = XW + 16
        self.p4_setup()
        for ct in range(7):
            if ct == 5:
                a.wait_vm_tag('stA')
                a(f's_add_u32 s{sT4}, s{sPH}, 4'); a(f'v_mov_b32 v{T}, s{sT4}')
                a('s_mov_b64 exec, 1'); a(f'buffer_store_dword v{T}, v{vZERO}, {srd(S_WS)}, s{sFLG} offen'); a('s_mov_b64 exec, -1')
            if ct == 6:
                a(f'buffer_load_dword v{T+23}, v{vPOLL}, {srd(S_WS)}, 0 offen sc1')
            cs = CB_ + 8*(ct & 1); bc = cs + 4
            U4 = [(t, pz) for t in range(2) for pz in range(2)]
            y = {u: SC + 2*i for i, u in enumerate(U4)}; e = {u: SC + 8 + 2*i for i, u in enumerate(U4)}; d = {u: SC + 16 + 2*i for i, u in enumerate(U4)}
            for (t, pz) in U4:
                a(f'v_pk_fma_f32 {v(y[t,pz],2)}, {v(cs+2*pz,2)}, {v(RS[t],2)}, {v(bc+2*pz,2)} op_sel:[0,1,0] op_sel_hi:[1,1,1] neg_lo:[0,1,0] neg_hi:[0,1,0]')
            if ct + 2 < 7: crd(ct+2)
            for (t, pz) in U4:
                a(f'v_pk_fma_f32 {v(y[t,pz],2)}, {v(ACC+8*ct+4*t+2*pz,2)}, {v(RS[t],2)}, {v(y[t,pz],2)} op_sel_hi:[1,0,1]')
            for u in U4:
                a(f'v_exp_f32 v{e[u]}, v{y[u]}'); a(f'v_exp_f32 v{e[u]+1}, v{y[u]+1}')
            for u in U4: a(f'v_pk_add_f32 {v(d[u],2)}, {v(e[u],2)}, 2.0 op_sel_hi:[1,0]')
            for u in U4: a(f'v_pk_fma_f32 {v(d[u],2)}, {v(e[u],2)}, {v(d[u],2)}, 2.0 op_sel_hi:[1,1,0]')
            for u in U4:
                a(f'v_rcp_f32 v{d[u]}, v{d[u]}'); a(f'v_rcp_f32 v{d[u]+1}, v{d[u]+1}')
            for u in U4: a(f'v_pk_fma_f32 {v(d[u],2)}, {v(d[u],2)}, s[{sC1}:{sC1+1}], {v(LNV,2)} op_sel_hi:[1,0,1]')
            for u in U4: a(f'v_pk_mul_f32 {v(y[u],2)}, {v(y[u],2)}, {v(d[u],2)}')
            par = (ct >> 1) & 1
            for (t, pz) in U4: a(f'v_cvt_pk_bf16_f32 v{OUTQ(t,par)+2*(ct&1)+pz}, v{y[t,pz]}, v{y[t,pz]+1}')
            if ct & 1:
                for t in range(2):
                    a(f'buffer_store_dwordx4 {v(OUTQ(t,par),4)}, v{vL16}, {srd(S_WS)}, s{sT0 if t == 0 else sT2} offen offset:{(ct>>1)*1024}{AMOD}', tag='stA' if ct < 4 else 'stB')
            if ct == 6:
                for t in range(2):
                    a(f'buffer_store_dwordx2 {v(OUTQ(t,par),2)}, v{vL16}, {srd(S_WS)}, s{sT1 if t == 0 else sT3} offen{AMOD}', tag='stB')
        self.stamp('p3_done')
    def p4_setup(self):
        a = self.a; T = TMP
        a(f's_lshl_b32 s{sT4}, s{sGRP}, 4'); a(f's_lshl_b32 s{sT5}, s{sWAVE}, 2'); a(f's_add_u32 s{sT4}, s{sT4}, s{sT5}'); a(f's_lshl_b32 s{sT4}, s{sT4}, 2')
        a(f's_and_b32 s{sT5}, s{sRB}, 1'); a(f's_lshl_b32 s{sT5}, s{sT5}, 1'); a(f's_add_u32 s{sT4}, s{sT4}, s{sT5}')
        a(f'v_and_b32 v{T+1}, 3, v{vLANE}'); a(f'v_lshlrev_b32 v{T+1}, 2, v{T+1}'); a(f'v_bfe_u32 v{T+2}, v{vLANE}, 2, 1')
        a(f'v_add_u32 v{T+1}, v{T+1}, v{T+2}'); a(f'v_add_u32 v{T+1}, s{sT4}, v{T+1}'); a(f'v_lshlrev_b32 v{vPOLL}, 2, v{T+1}')
        for tl in range(4):
            a(f's_add_u32 s{sT4}, s{sWAVE}, {tl}'); a(f's_and_b32 s{sT4}, s{sT4}, 3'); a(f's_lshl_b32 s{sT5}, s{sRB}, 2'); a(f's_add_u32 s{sT4}, s{sT4}, s{sT5}')
            a(f's_mul_i32 s{sT4}, s{sT4}, 57344'); a(f's_mul_i32 s{sT5}, s{sWAVE}, {14*1024}'); a(f's_add_u32 s{sT4}, s{sT4}, s{sT5}')
            a(f's_add_u32 s{55+tl}, s{sT4}, {ACT:#x}')
        for ct in range(4):
            a(f'v_add_u32 v{T+4+ct}, s{sB4H}, v{vPAT+ct}'); a(f'v_add_u32 v{T+8+ct}, s{sB4L}, v{vPAT+ct}')
        for k, r in enumerate((T+14, T+15, T+22)): a(f'v_add_u32 v{r}, {4096*(k+1)}, v{vL16}')
    def p4(self):
        a = self.a; T = TMP
        NS = 5
        sX = [55, 56, 57, 58]
        R4H, R4L = T+4, T+8
        VO = [vL16, T+14, T+15, T+22]
        Lr = self.lab('p4rdy')
        a(f's_add_u32 s{sXO}, s{sPH}, 4')
        a(f'v_cmp_gt_u32 vcc, s{sXO}, v{T+23}'); snap = a.cond_skip(f's_cbranch_vccz {Lr}')
        self.poll(sXO)
        a.cond_join(Lr, (snap[0], snap[1], snap[2], a.nvm, a.nlg))
        self.stamp('p4_ready')
        def xload(n):
            k = self.PI[n]
            return [f'buffer_load_dwordx4 {v(XW+16*(n%NS)+4*tl,4)}, v{VO[k//4]}, {srd(S_WS)}, s{sX[tl]} offen offset:{(k%4)*1024}{XMOD}' for tl in range(4)]
        init, plan = self.xplan(14, NS, 2, lambda s: 2 if s < 2 else 1)
        for n in init: self.emit_all(xload(n))
        a.wait_vm_tag('stB')
        a(f's_add_u32 s{sT4}, s{sPH}, 5'); a(f'v_mov_b32 v{T}, s{sT4}')
        a('s_mov_b64 exec, 1'); a(f'buffer_store_dword v{T}, v{vZERO}, {srd(S_WS)}, s{sFLG} offen'); a('s_mov_b64 exec, -1')
        self.barrier('bB4', drain=False)
        stepB = min(s for s in plan if any(m >= 8 for m in plan[s]))
        def late_check():
            Ll = self.lab('p4late')
            a(f's_add_u32 s{sXO}, s{sPH}, 5')
            a(f'v_cmp_gt_u32 vcc, s{sXO}, v{T+23}'); snap = a.cond_skip(f's_cbranch_vccz {Ll}')
            lg = list(a.lgq)
            self.poll(sXO, keep_lg=True)
            a.lgq = lg
            a.cond_join(Ll, (snap[0], snap[1], snap[2], a.nvm, a.nlg))
        def wread(n, ct):
            part, off = self.b4_slot(n); base = (R4H if part == 'H' else R4L) + ct
            return [f'ds_read_b64_tr_b16 {v(WF+16*(n&1)+4*ct+2*h,2)}, v{base} offset:{off+h*2048}' for h in range(2)]
        for ct in range(4): self.emit_all(wread(0, ct))
        for n in range(14):
            if n in (1, 4, 7, 10, 13): self.fstamp('p4', (1, 4, 7, 10, 13).index(n))
            if n == stepB - 2: a(f'buffer_load_dword v{T+23}, v{vPOLL}, {srd(S_WS)}, 0 offen sc1')
            if n == stepB: late_check()
            if n == 8: self.barrier('B1p', drain=False)
            if n == 10: self.barrier('B2p', drain=False)
            seq = []
            if n + 1 < 14:
                for ct in range(4): seq += wread(n+1, ct)
            xl = []
            for m in plan[n]: xl += xload(m)
            merged = []
            i = j = 0
            while i < len(seq) or j < len(xl):
                if i < len(seq): merged.append(seq[i]); i += 1
                if j < len(xl): merged.append(xl[j]); j += 1
            m = 0
            for ct in range(4):
                for tl in range(4):
                    acc = v(ACC+16*tl+4*ct, 4)
                    a(f'v_mfma_f32_16x16x32_bf16 {acc}, {v(WF+16*(n&1)+4*ct,4)}, {v(XW+16*(n%NS)+4*tl,4)}, {acc if n else 0}')
                    m += 1
                    k = 2 if len(merged) > (16 - m) else 1
                    for _ in range(k):
                        if merged: self.emit(merged.pop(0))
            assert not merged
            if n == 1: self.barrier('A1', drain=False)
            if n == 4: self.barrier('A2', drain=False)
        self.stamp('p4_main'); self.fstamp_store('p4', 5)
        RA = T+12
        a(f'v_add_u32 v{RA}, s{sB4L}, v{vL16}')
        for tl in range(1, 4):
            for ct in range(4): a(f'ds_write_b128 v{RA}, {v(ACC+16*tl+4*ct,4)} offset:{(tl-1)*4096+ct*1024}')
        for tl in range(1, 4):
            a(f's_sub_u32 s{sT4}, s{sWAVE}, {tl}'); a(f's_and_b32 s{sT4}, s{sT4}, 3'); a(f's_mul_i32 s{sT4}, s{sT4}, {B4LS}')
            a(f'v_add_u32 v{RA+tl}, s{sT4}, v{vL16}')
        if opt('xs', 0): self.stamp('p4_wr')
        self.barrier('b9')
        if opt('xs', 0): self.stamp('p4_b9')
        for tl in range(1, 4):
            for ct in range(4): a(f'ds_read_b128 {v(ACC+16*tl+4*ct,4)}, v{RA+tl} offset:{(tl-1)*4096+ct*1024}')
        for tl in range(1, 4):
            for i in range(0, 16, 2): a(f'v_pk_add_f32 {v(ACC+i,2)}, {v(ACC+i,2)}, {v(ACC+16*tl+i,2)}')
        self.barrier('b10')
        self.stamp('p4_red')
        Lf = self.lab('final')
        a(f's_cmp_lg_u32 s{sIT}, 0'); a(f's_cbranch_scc1 {Lf}')
        self.resid_add(ACC)
        S1 = self.resid_store_xf()
        Lnh = self.lab('nohalo2')
        a(f's_cmp_lg_u32 s{sWAVE}, 3'); snap = a.cond_skip(f's_cbranch_scc1 {Lnh}')
        a(f's_cmp_lg_u32 s{sRB}, 1'); a(f's_cbranch_scc1 {Lnh}')
        a(f's_lshl_b32 s{sT0}, s{sCB}, 11'); a(f's_add_u32 s{sT0}, s{sT0}, {HSET + 3*HSZ:#x}')
        a(f'buffer_store_dwordx4 {v(vRP,4)}, v{vL16}, {srd(S_WS)}, s{sT0} offen sc1')
        a(f'buffer_store_dwordx4 {v(vRP+4,4)}, v{vL16}, {srd(S_WS)}, s{sT0} offen offset:1024 sc1')
        a(f's_mov_b32 s{sT1}, {HSET + 3*HSZ + HSTAT:#x}')
        a(f'buffer_store_dword v{S1}, v{vSTO}, {srd(S_WS)}, s{sT1} offen sc1')
        a('s_waitcnt vmcnt(0)')
        a.cond_join(Lnh, snap)
        a(f's_mov_b32 s{sT0}, 6')
        self.set_flag(sT0)
        Lnr = self.lab('noremote')
        a(f's_cmp_lg_u32 s{sWAVE}, 3'); snap = a.cond_skip(f's_cbranch_scc1 {Lnr}')
        a(f's_cmp_lg_u32 s{sRB}, 3'); a(f's_cbranch_scc1 {Lnr}')
        a(f's_cmp_eq_u32 s{sXCC}, 7'); a(f's_cbranch_scc1 {Lnr}')
        a(f's_lshl_b32 s{sT0}, s{sCB}, 11'); a(f's_add_u32 s{sT0}, s{sT0}, {HSET + 2*HSZ:#x}')
        a(f'buffer_store_dwordx4 {v(vRP,4)}, v{vL16}, {srd(S_RM)}, s{sT0} offen sc1')
        a(f'buffer_store_dwordx4 {v(vRP+4,4)}, v{vL16}, {srd(S_RM)}, s{sT0} offen offset:1024 sc1')
        a(f's_mov_b32 s{sT1}, {HSET + 2*HSZ + HSTAT:#x}')
        a(f'buffer_store_dword v{S1}, v{vSTO}, {srd(S_RM)}, s{sT1} offen sc1')
        a(f's_add_u32 s{sT2}, s{sXCC}, 1'); a(f's_lshl_b32 s{sT2}, s{sT2}, 2'); a(f's_add_u32 s{sT2}, s{sT2}, 32'); a(f'v_mov_b32 v{vPOLL}, s{sT2}')
        a(f's_mov_b32 s{sT3}, 1')
        self.poll(sT3, srdb=S_DBG)
        a(f'v_mov_b32 v{T}, 1'); a(f's_lshl_b32 s{sT0}, s{sCB}, 2'); a(f's_add_u32 s{sT0}, s{sT0}, {HFLAG}')
        a('s_mov_b64 exec, 1'); a(f'buffer_store_dword v{T}, v{vZERO}, {srd(S_RM)}, s{sT0} offen sc1'); a('s_mov_b64 exec, -1')
        a('s_waitcnt vmcnt(0)')
        a.cond_join(Lnr, snap)
        self.stamp('p4_done')
        a(f's_mov_b32 s{sIT}, {DELTA:#x}'); a(f's_mov_b32 s{sPH}, 6')
        a.wait_all()
        a('s_branch L_iter')
        a.label(Lf); a.forget()
        self.resid_add(ACC)
        a(f's_lshl_b32 s{sT0}, s{sXCC}, 4'); a(f's_add_u32 s{sT0}, s{sT0}, s{sT4}'); a(f's_lshl_b32 s{sT0}, s{sT0}, 14')
        for q in range(2):
            a(f'v_permlane16_swap_b32 v{vRP+4*q}, v{vRP+4*q+2}'); a(f'v_permlane16_swap_b32 v{vRP+4*q+1}, v{vRP+4*q+3}')
        for q in range(2):
            a(f'buffer_store_dwordx4 {v(vRP+4*q,4)}, v{vOUT}, {srd(S_MISC)}, s{sT0} offen offset:{64*q}{OMOD}')
        self.stamp('end')
        if self.ts:
            a('s_memrealtime s[6:7]'); a('s_waitcnt lgkmcnt(0)')
            a(f'v_mov_b32 v251, s6'); a('v_mov_b32 v250, s59'); a(f's_add_u32 s{sTMPB}, s{sTSB}, {4*30}'); a('s_mov_b64 exec, 1')
            a(f'buffer_store_dwordx2 v[250:251], v{vZERO}, {srd(S_WS)}, s{sTMPB} offen'); a('s_mov_b64 exec, -1')
    def stouch(self, name, l0, n):
        a = self.a
        if n <= 0: return
        if getattr(self, 'st_key', None) != name:
            if name in ('w2a', 'w2b'):
                a(f's_lshr_b32 s{sT0}, s{sQ}, 5'); a(f's_mul_i32 s{sT0}, s{sT0}, {448*1024}')
                a(f's_and_b32 s{sT1}, s{sQ}, 31'); a(f's_mul_i32 s{sT1}, s{sT1}, {7*1024}'); a(f's_add_u32 s{sTMPB}, s{sT0}, s{sT1}')
                if name == 'w2b': a(f's_add_u32 s{sTMPB}, s{sTMPB}, {224*1024}')
                ptr = 6
            elif name in ('w1a', 'w1b'):
                a(f's_mul_i32 s{sTMPB}, s{sQ}, 7168')
                if name == 'w1b': a(f's_add_u32 s{sTMPB}, s{sTMPB}, {256*3584}')
                ptr = 4
            elif name in ('ar', 'oa', 'xb'):
                if name == 'xb':
                    a(f's_lshl_b32 s{sTMPB}, s{sQ}, 11'); a(f's_add_u32 s{sTMPB}, s{sTMPB}, {XB:#x}')
                else:
                    a(f's_lshr_b32 s{sT0}, s{sQ}, 3'); a(f's_mul_i32 s{sT0}, s{sT0}, 57344'); a(f's_and_b32 s{sT1}, s{sQ}, 7')
                    a(f's_mul_i32 s{sT1}, s{sT1}, {2048 if name == "oa" else 5120}'); a(f's_add_u32 s{sTMPB}, s{sT0}, s{sT1}')
                    a(f's_add_u32 s{sTMPB}, s{sTMPB}, {ACT + (0 if name == "oa" else 16384):#x}')
                a(f's_mul_i32 s{sT0}, s{sXCC}, {XSTRIDE:#x}'); a(f's_add_u32 s{sTMPB}, s{sTMPB}, s{sT0}')
                ptr = 9
            a(f's_add_u32 s4, s{KA+2*ptr}, s{sTMPB}'); a(f's_addc_u32 s5, s{KA+2*ptr+1}, 0')
            self.st_key = name
        for i in range(l0, l0+n):
            if self.sm_out >= 15:
                a.allow_smem_wait = True; a._put_raw_wait(14); a.allow_smem_wait = False
                self.sm_out = 14
            a(f's_load_dword s{6 + (i & 1)}, s[4:5], {64*i}')
            self.sm_out += 1
    def drain_lg(self):
        self.a('s_waitcnt lgkmcnt(0)'); self.sm_out = 0
    def tstream(self, items):
        self.tq_items = list(items); self.tq_pos = 0
    def vtouch(self, name):
        a = self.a
        if name in ('w1a', 'w1b'):
            a(f's_mul_i32 s{sTMPB}, s{sQ}, 7168');
            if name == 'w1b': a(f's_add_u32 s{sTMPB}, s{sTMPB}, {256*3584}')
            sr, n = S_W1, 56
        elif name in ('w2a', 'w2b'):
            a(f's_lshr_b32 s{sT0}, s{sQ}, 5'); a(f's_mul_i32 s{sT0}, s{sT0}, {448*1024}')
            a(f's_and_b32 s{sT1}, s{sQ}, 31'); a(f's_mul_i32 s{sT1}, s{sT1}, {7*1024}'); a(f's_add_u32 s{sTMPB}, s{sT0}, s{sT1}')
            if name == 'w2b': a(f's_add_u32 s{sTMPB}, s{sTMPB}, {224*1024}')
            sr, n = S_W2, 56
        elif name == 'wo':
            a(f's_lshl_b32 s{sTMPB}, s{sQ}, 12'); sr, n = S_WO, 32
        elif name == 'xb':
            a(f's_lshl_b32 s{sTMPB}, s{sQ}, 11'); a(f's_add_u32 s{sTMPB}, s{sTMPB}, {XB:#x}'); sr, n = S_WS, 16
        elif name == 'st':
            a(f's_lshl_b32 s{sTMPB}, s{sQ}, 7'); a(f's_add_u32 s{sTMPB}, s{sTMPB}, {STB:#x}'); sr, n = S_WS, 1
        elif name in ('oa', 'ar'):
            a(f's_lshr_b32 s{sT0}, s{sQ}, 3'); a(f's_mul_i32 s{sT0}, s{sT0}, 57344'); a(f's_and_b32 s{sT1}, s{sQ}, 7')
            a(f's_mul_i32 s{sT1}, s{sT1}, {2048 if name == "oa" else 5120}'); a(f's_add_u32 s{sTMPB}, s{sT0}, s{sT1}')
            a(f's_add_u32 s{sTMPB}, s{sTMPB}, {ACT + (0 if name == "oa" else 16384):#x}')
            sr, n = S_WS, (16 if name == 'oa' else 40)
        elif name in ('wqa', 'wqb'):
            a(f's_mul_i32 s{sTMPB}, s{sQ}, 6144')
            if name == 'wqb': a(f's_add_u32 s{sTMPB}, s{sTMPB}, {256*3072}')
            sr, n = S_WQ, 48
        a(f'v_min_u32 v19, {n-1}, v{vLANE}'); a(f'v_lshlrev_b32 v19, 7, v19')
        a(f'buffer_load_dword v17, v19, {srd(sr)}, s{sTMPB} offen', tag='T')
    STSZ = {'ar': 80, 'oa': 32, 'xb': 32, 'w1a': 112, 'w1b': 112, 'w2a': 112, 'w2b': 112}
    def tq(self, n):
        while n > 0 and self.tq_items:
            name = self.tq_items[0]
            k = min(n, self.STSZ[name] - self.tq_pos)
            self.stouch(name, self.tq_pos, k)
            self.tq_pos += k; n -= k
            if self.tq_pos == self.STSZ[name]: self.tq_items.pop(0); self.tq_pos = 0
    RB1 = 32; RB3 = 128
    def b1_load(self, c):
        a = self.a
        for mat in range(3):
            for h in range(2):
                i = 6*c + 2*mat + h
                a(f's_add_u32 s{sTMPA}, s{sB1S}, {(128*c + 16*h)*3072 + mat*1024}')
                a(f'buffer_load_dwordx4 {v(self.RB1+4*i,4)}, v{hD1}, {srd(S_WQ)}, s{sTMPA} offen', tag=f'B1{c}')
    def b1_write(self, c):
        a = self.a
        for mat in range(3):
            for h in range(2):
                i = 6*c + 2*mat + h
                off = 4*c*6144 + mat*2048 + h*1024
                a(f'ds_write_b128 v{3 if off < 49152 else 18}, {v(self.RB1+4*i,4)} offset:{off % 49152}')
    def h_phase0_load(self):
        a = self.a; R = [240, 244, 248]
        a(f's_lshl_b32 s{sT0}, s{sXCC}, 8'); a(f's_lshl_b32 s{sT1}, s{sSLOT}, 3'); a(f's_add_u32 s{sT0}, s{sT0}, s{sT1}')
        a(f's_lshl_b32 s{sT1}, s{sWAVE}, 1'); a(f's_add_u32 s{sT0}, s{sT0}, s{sT1}'); a(f's_lshl_b32 s{sT0}, s{sT0}, 10')
        a(f'buffer_load_dwordx4 {v(R[0],4)}, v{vL16}, {srd(S_MISC)}, s{sT0} offen')
        a(f'buffer_load_dwordx4 {v(R[1],4)}, v{vL16}, {srd(S_MISC)}, s{sT0} offen offset:1024')
        a(f's_lshl_b32 s{sT1}, s{sXCC}, 8'); a(f's_lshl_b32 s{sT2}, s{sSLOT}, 2'); a(f's_add_u32 s{sT1}, s{sT1}, s{sT2}'); a(f's_add_u32 s{sT1}, s{sT1}, s{sWAVE}')
        a(f's_sub_u32 s{sT1}, s{sT1}, 16'); a(f's_lshl_b32 s{sT1}, s{sT1}, 10')
        a(f's_cmp_eq_u32 s{sXCC}, 0'); a(f's_cselect_b32 s{sT1}, 0x7ff00000, s{sT1}')
        a(f'buffer_load_dwordx4 {v(R[2],4)}, v{vL16}, {srd(S_MISC)}, s{sT1} offen')
        a(f's_lshl_b32 s{sT2}, s{sXCC}, 2'); a(f's_add_u32 s{sT2}, s{sT2}, 32'); a(f'v_mov_b32 v30, s{sT2}')
        a(f'buffer_load_dword v31, v30, {srd(S_DBG)}, 0 offen sc1')
    def h_phase0(self):
        a = self.a; R = [240, 244, 248]
        S1 = [20, 22, 24]; U = [26, 27, 28]; XA = 29; SA = 19; Q = 252
        for i in range(3):
            r = R[i]; s1 = S1[i]; s2 = s1 + 1
            a(f'v_dot2_f32_bf16 v{s1}, v{r}, s{sONES}, 0'); a(f'v_dot2_f32_bf16 v{s2}, v{r}, v{r}, 0')
            for k in range(1, 4):
                a(f'v_dot2_f32_bf16 v{s1}, v{r+k}, s{sONES}, v{s1}'); a(f'v_dot2_f32_bf16 v{s2}, v{r+k}, v{r+k}, v{s2}')
        for i in range(3): a(f'v_permlane32_swap_b32 v{S1[i]}, v{S1[i]+1}')
        for i in range(3): a(f'v_add_f32 v{S1[i]}, v{S1[i]}, v{S1[i]+1}')
        for i in range(3): a(f'v_mov_b32 v{U[i]}, v{S1[i]}')
        for i in range(3): a(f'v_permlane16_swap_b32 v{U[i]}, v{S1[i]}')
        for i in range(3): a(f'v_add_f32 v{S1[i]}, v{S1[i]}, v{U[i]}')
        for sh in (8, 4, 2, 1):
            for i in range(3): a(f'v_add_f32_dpp v{S1[i]}, v{S1[i]}, v{S1[i]} row_ror:{sh} row_mask:0xf bank_mask:0xf')
        a(f'v_lshrrev_b32 v{XA}, 2, v{vLANE}'); a(f'v_lshlrev_b32 v{XA}, 10, v{XA}')
        a(f'v_and_b32 v{SA}, 1, v{vLANE}'); a(f'v_lshlrev_b32 v{SA}, 9, v{SA}'); a(f'v_add_u32 v{XA}, v{XA}, v{SA}')
        a(f'v_and_b32 v{SA}, 2, v{vLANE}'); a(f'v_lshlrev_b32 v{SA}, 2, v{SA}'); a(f'v_add_u32 v{XA}, v{XA}, v{SA}')
        a(f'v_lshlrev_b32 v{SA}, 8, v{vLANE}')
    def h_phase0_store(self):
        a = self.a; R = [240, 244, 248]
        S1 = [20, 22, 24]; XA = 29; SA = 19; Q = 252
        a(f's_lshr_b32 s{sT0}, s{sSLOT}, 1'); a(f's_and_b32 s{sT1}, s{sSLOT}, 1'); a(f's_lshl_b32 s{sT1}, s{sT1}, 3')
        a(f's_lshl_b32 s{sT2}, s{sWAVE}, 1'); a(f's_add_u32 s{sT1}, s{sT1}, s{sT2}'); a(f's_lshl_b32 s{sT1}, s{sT1}, 4')
        a(f's_lshl_b32 s{sT2}, s{sT0}, 14'); a(f's_add_u32 s{sT2}, s{sT2}, s{sT1}'); a(f's_add_u32 s{sT2}, s{sT2}, {XB:#x}')
        a(f's_lshl_b32 s{sT3}, s{sT0}, 10'); a(f's_add_u32 s{sT3}, s{sT3}, s{sT1}'); a(f's_add_u32 s{sT3}, s{sT3}, {STB:#x}')
        def data(i, sx, off):
            r = R[i]
            a(f'buffer_store_dwordx2 {v(r,2)}, v{XA}, {srd(S_WS)}, s{sx} offen offset:{off}', tag='st')
            a(f'buffer_store_dwordx2 {v(r+2,2)}, v{XA}, {srd(S_WS)}, s{sx} offen offset:{off+256}', tag='st')
        def stat(i, ss, off, mod=' sc1'):
            a(f'v_readlane_b32 s{sT4}, v{S1[i]}, 0'); a(f'v_readlane_b32 s{sT5}, v{S1[i]}, 32')
            for k in range(4): a(f'v_mov_b32 v{Q+k}, 0')
            a(f'v_writelane_b32 v{Q}, s{sT4}, 0'); a(f'v_writelane_b32 v{Q+1}, s{sT5}, 0')
            a('s_mov_b64 exec, 0xf')
            a(f'buffer_store_dwordx4 {v(Q,4)}, v{SA}, {srd(S_WS)}, s{ss} offen offset:{off}{mod}', tag='st')
            a('s_mov_b64 exec, -1')
        stat(0, sT3, 0); stat(1, sT3, 16)
        a(f's_lshl_b32 s{sT0}, s{sSLOT}, 2'); a(f's_add_u32 s{sT0}, s{sT0}, s{sWAVE}'); a(f's_lshl_b32 s{sT0}, s{sT0}, 4')
        a(f's_add_u32 s{sT3}, s{sT0}, {HSET+HSTAT:#x}'); a(f's_cmp_lt_u32 s{sSLOT}, 4'); a(f's_cselect_b32 s{sT3}, s{sT3}, 0x7ff00000')
        stat(2, sT3, 0)
        a(f's_add_u32 s{sT3}, s{sT1}, {HSET+HSZ+HSTAT:#x}'); a(f's_lshr_b32 s{sT0}, s{sSLOT}, 1'); a(f's_cmp_eq_u32 s{sT0}, 7'); a(f's_cselect_b32 s{sT3}, s{sT3}, 0x7ff00000')
        stat(0, sT3, 0); stat(1, sT3, 16)
    def h_phase0_flag(self):
        a = self.a
        a.wait_vm_tag('st')
        L = self.lab('hrdy'); Lo = self.lab('hrdyok')
        a.wait_regs('v31')
        a(f's_mov_b32 s{sSPIN}, 0')
        a.label(L)
        a(f'v_cmp_eq_u32 vcc, 0, v31'); a(f's_cbranch_vccz {Lo}')
        vm = list(a.vmq)
        a.raw(f'buffer_load_dword v31, v30, {srd(S_DBG)}, 0 offen sc1'); a.raw('s_waitcnt vmcnt(0)')
        a(f's_add_u32 s{sSPIN}, s{sSPIN}, 1'); a(f's_cmp_lt_u32 s{sSPIN}, 0x40000'); a(f's_cbranch_scc1 {L}')
        a.label(Lo)
        a(f'v_mov_b32 v31, 1')
        a('s_mov_b64 exec, 1'); a(f'buffer_store_dword v31, v{vZERO}, {srd(S_WS)}, s{sFLG} offen offset:512'); a('s_mov_b64 exec, -1')
    def b3_load(self, part):
        a = self.a
        for ds in range(2):
            s = 8*part + ds
            a(f's_add_u32 s{sTMPA}, s{sB3S}, {s*32*3584}')
            for j in range(7):
                a(f'buffer_load_dwordx4 {v(self.RB3+4*(14*part+7*ds+j),4)}, v{hD3+j}, {srd(S_W1)}, s{sTMPA} offen', tag=f'B3{part}')
                if self.ilv: self.tq(self.ilv)
    def b3_write(self, part):
        a = self.a
        for ds in range(2):
            for j in range(7):
                a(f'ds_write_b128 v{4+part}, {v(self.RB3+4*(14*part+7*ds+j),4)} offset:{ds*7168 + j*1024}')
    def h_halo(self):
        a = self.a; P = 240; A = 20; Bv = 24; C = 28
        a(f's_lshl_b32 s{sT0}, s{sWAVE}, 10'); a(f's_add_u32 s{sT0}, s{sT0}, {HPX}'); a(f'v_add_u32 v19, s{sT0}, v{vL16}')
        for w in range(4): a(f'ds_read_b128 {v(P+4*w,4)}, v19 offset:{w*4096}')
        Lv = self.lab('hv'); Lj = self.lab('hvj')
        a(f's_cmp_ge_u32 s{sWAVE}, 2'); snap = a.cond_skip(f's_cbranch_scc1 {Lv}')
        a(f'v_and_b32 v18, 15, v{vLANE}'); a(f'v_lshlrev_b32 v18, 2, v18'); a(f'v_add_u32 v18, {STS+1024}, v18')
        a(f'ds_read_b32 v{A}, v18'); a(f'ds_read_b32 v{Bv}, v18 offset:64')
        a(f'v_lshrrev_b32 v18, 4, v{vLANE}'); a(f'v_lshlrev_b32 v18, 4, v18'); a(f's_lshl_b32 s{sT0}, s{sWAVE}, 6'); a(f's_add_u32 s{sT0}, s{sT0}, {CR+1024+128}'); a(f'v_add_u32 v18, s{sT0}, v18')
        a(f'ds_read_b128 {v(C,4)}, v18')
        for k in range(1, 4): a(f'v_mov_b32 v{A+k}, v{A}'); a(f'v_mov_b32 v{Bv+k}, v{Bv}')
        a('s_waitcnt lgkmcnt(0)')
        a(f's_branch {Lj}')
        a.label(Lv); a.lgq = list(snap[1])
        a(f'v_lshrrev_b32 v18, 4, v{vLANE}'); a(f'v_lshlrev_b32 v18, 4, v18'); a(f'v_add_u32 v18, {STS+1024}, v18')
        a(f'ds_read_b128 {v(A,4)}, v18'); a(f'ds_read_b128 {v(Bv,4)}, v18 offset:64')
        a(f'v_and_b32 v18, 15, v{vLANE}'); a(f'v_lshlrev_b32 v18, 2, v18'); a(f's_and_b32 s{sT0}, s{sWAVE}, 1'); a(f's_lshl_b32 s{sT0}, s{sT0}, 6'); a(f's_add_u32 s{sT0}, s{sT0}, {CR+1024+256}')
        a(f'v_add_u32 v18, s{sT0}, v18')
        a(f'ds_read_b32 v{C}, v18')
        for k in range(1, 4): a(f'v_mov_b32 v{C+k}, v{C}')
        a('s_waitcnt lgkmcnt(0)')
        a.label(Lj); a.lgq = []
        a('s_nop 1')
        for i in range(0, 4, 2):
            a(f'v_pk_add_f32 {v(P+i,2)}, {v(P+i,2)}, {v(P+4+i,2)}'); a(f'v_pk_add_f32 {v(P+8+i,2)}, {v(P+8+i,2)}, {v(P+12+i,2)}')
        for i in range(0, 4, 2): a(f'v_pk_add_f32 {v(P+i,2)}, {v(P+i,2)}, {v(P+8+i,2)}')
        for i in range(0, 4, 2): a(f'v_pk_mul_f32 {v(Bv+i,2)}, {v(Bv+i,2)}, {v(C+i,2)}')
        for i in range(0, 4, 2): a(f'v_pk_fma_f32 {v(P+i,2)}, {v(P+i,2)}, {v(A+i,2)}, {v(Bv+i,2)} neg_lo:[0,0,1] neg_hi:[0,0,1]')
        for i in range(2): a(f'v_cvt_pk_bf16_f32 v{P+4+i}, v{P+2*i}, v{P+2*i+1}')
        a(f'v_lshlrev_b32 v18, 3, v{vLANE}'); a(f's_lshl_b32 s{sT0}, s{sWAVE}, 9'); a(f's_add_u32 s{sT0}, s{sT0}, {KVX}'); a(f'v_add_u32 v18, s{sT0}, v18')
        a(f'ds_write_b64 v18, {v(P+4,2)}')
        self.drain_lg()
    def h_bias(self):
        a = self.a
        P5 = KA + 10
        a(f's_mov_b32 s{S_MISC}, s{P5}'); a(f's_and_b32 s{S_MISC+1}, s{P5+1}, 0xffff'); a(f's_mov_b32 s{S_MISC+2}, {1792*2}'); a(f's_mov_b32 s{S_MISC+3}, 0x20000')
        a(f's_mul_i32 s{sT0}, s{sC}, 224')
        a(f'v_min_u32 v17, 27, v{vLANE}'); a(f'v_lshrrev_b32 v21, 2, v17'); a(f'v_and_b32 v17, 3, v17')
        a(f'v_lshlrev_b32 v19, 5, v21'); a(f'v_lshlrev_b32 v20, 3, v17'); a(f'v_add_u32 v19, v19, v20')
        a(f'buffer_load_dwordx2 v[24:25], v19, {srd(S_MISC)}, s{sT0} offen')
    def h_bias_write(self):
        a = self.a
        a(f'v_min_u32 v17, 27, v{vLANE}'); a(f'v_lshrrev_b32 v21, 2, v17'); a(f'v_and_b32 v17, 3, v17')
        a(f'v_lshlrev_b32 v19, 6, v21'); a(f'v_lshlrev_b32 v20, 4, v17'); a(f'v_add_u32 v19, v19, v20'); a(f'v_add_u32 v19, {CR+512}, v19')
        a(f's_mov_b32 s{sT1}, {f2u(LOG2E):#x}')
        a(f'v_lshlrev_b32 v28, 16, v24'); a(f'v_and_b32 v29, 0xffff0000, v24'); a(f'v_lshlrev_b32 v30, 16, v25'); a(f'v_and_b32 v31, 0xffff0000, v25')
        for k in range(4): a(f'v_mul_f32 v{28+k}, s{sT1}, v{28+k}')
        a(f'ds_write_b128 v19, v[28:31]')
    def stage_reg(self, n):
        return {2: self.RB1, 3: self.RB1+16, 4: self.RB1+32, 5: self.RB1+48, 9: self.RB1+64, 10: self.RB1+80,
                11: self.RB3+56, 12: self.RB3+72, 13: self.RB3+88}[n]
    def b4_stage_quads(self, q0, q1):
        for q in range(q0, q1): self.b4_stage_load(2 + q//4, only=q % 4)
    def b4_stage_load(self, n, only=None):
        a = self.a
        for h in range(2):
            for i in range(2):
                if only is not None and only != 2*h + i: continue
                a(f's_add_u32 s{sTMPA}, s{sB4S}, {(self.w2_rowbase(n, h) + 8*i)*1024}')
                a(f'buffer_load_dwordx4 {v(self.stage_reg(n) + 8*h + 4*i, 4)}, v{hD2}, {srd(S_W2)}, s{sTMPA} offen', tag=f'S4_{n}')
    def b4_stage_write(self, n):
        a = self.a
        part, off = self.b4_slot(n)
        a(f'v_add_u32 v17, s{sB4H if part == "H" else sB4L}, v{vL16}')
        for h in range(2):
            for i in range(2):
                a(f'ds_write_b128 v17, {v(self.stage_reg(n) + 8*h + 4*i, 4)} offset:{off + h*2048 + i*1024}')
    def h_colsum_qkv(self):
        a = self.a; ONE = 20; AC = 24; WB = 240; AT, AV = 19, 18
        for k in range(4): a(f'v_mov_b32 v{ONE+k}, s{sONES}')
        a(f's_and_b32 s{sT0}, s{sWAVE}, 1'); a(f's_lshl_b32 s{sT0}, s{sT0}, 5'); a(f'v_xor_b32 v{AV}, s{sT0}, v15')
        a(f's_lshr_b32 s{sT0}, s{sWAVE}, 1'); a(f's_lshl_b32 s{sT0}, s{sT0}, 11'); a(f'v_add_u32 v{AT}, s{sT0}, v{AV}')
        a(f'v_add_u32 v{AV}, 4096, v{AV}')
        for k in range(8): a(f'v_mov_b32 v{AC+k}, 0')
        def rd(s):
            so = (s % 8)*6144; b = WB + 8*(s % 2)
            if s == 8:
                a(f'v_add_u32 v{AT}, {8*6144}, v{AT}'); a(f'v_add_u32 v{AV}, {8*6144}, v{AV}')
            for h in range(2):
                a(f'ds_read_b64_tr_b16 {v(b+2*h,2)}, v{AT} offset:{so+h*1024}')
                a(f'ds_read_b64_tr_b16 {v(b+4+2*h,2)}, v{AV} offset:{so+h*1024}')
        rd(0); rd(1)
        for s in range(16):
            b = WB + 8*(s % 2)
            a(f'v_mfma_f32_16x16x32_bf16 {v(AC,4)}, {v(b,4)}, {v(ONE,4)}, {v(AC,4)}')
            a(f'v_mfma_f32_16x16x32_bf16 {v(AC+4,4)}, {v(ONE,4)}, {v(b+4,4)}, {v(AC+4,4)}')
            if s + 2 < 16: rd(s+2)
        CS = CR + 1024
        a(f'v_lshrrev_b32 v{AT}, 4, v{vLANE}'); a(f'v_lshlrev_b32 v{AT}, 4, v{AT}')
        a(f's_lshl_b32 s{sT0}, s{sWAVE}, 6'); a(f's_add_u32 s{sT0}, s{sT0}, {CS}'); a(f'v_add_u32 v{AT}, s{sT0}, v{AT}')
        a(f's_mov_b32 exec_lo, 0x00010001'); a(f's_mov_b32 exec_hi, 0x00010001')
        a(f'ds_write_b128 v{AT}, {v(AC,4)}')
        a('s_mov_b64 exec, 0xffff')
        a(f's_and_b32 s{sT0}, s{sWAVE}, 1'); a(f's_lshl_b32 s{sT0}, s{sT0}, 6'); a(f's_add_u32 s{sT0}, s{sT0}, {CS+256}')
        a(f'v_lshlrev_b32 v{AV}, 2, v{vLANE}'); a(f'v_add_u32 v{AV}, s{sT0}, v{AV}')
        a(f'ds_write_b32 v{AV}, v{AC+4}')
        a('s_mov_b64 exec, -1')
        self.drain_lg()
    def h_colsum_w1(self):
        a = self.a; ONE = 20; AC = 24; WB = 240; A0, A1 = 19, 18
        for k in range(4): a(f'v_mov_b32 v{ONE+k}, s{sONES}')
        a(f's_lshl_b32 s{sT0}, s{sWAVE}, 5'); a(f'v_add_u32 v{A0}, s{sT0}, v16'); a(f'v_add_u32 v{A1}, {9*7168}, v{A0}')
        for k in range(8): a(f'v_mov_b32 v{AC+k}, 0')
        def rd(s):
            base = A0 if s < 9 else A1; so = (s if s < 9 else s - 9)*7168; b = WB + 8*(s % 2)
            for q in range(2):
                for h in range(2):
                    a(f'ds_read_b64_tr_b16 {v(b+4*q+2*h,2)}, v{base} offset:{so+h*3584+q*128}')
        rd(0); rd(1)
        for s in range(16):
            b = WB + 8*(s % 2)
            for q in range(2):
                a(f'v_mfma_f32_16x16x32_bf16 {v(AC+4*q,4)}, {v(b+4*q,4)}, {v(ONE,4)}, {v(AC+4*q,4)}')
            if s + 2 < 16: rd(s+2)
        a(f'v_lshrrev_b32 v{A0}, 4, v{vLANE}'); a(f'v_lshlrev_b32 v{A0}, 4, v{A0}')
        a(f's_lshl_b32 s{sT0}, s{sWAVE}, 6'); a(f's_add_u32 s{sT0}, s{sT0}, {CR}'); a(f'v_add_u32 v{A0}, s{sT0}, v{A0}')
        a(f's_mov_b32 exec_lo, 0x00010001'); a(f's_mov_b32 exec_hi, 0x00010001')
        a(f'ds_write_b128 v{A0}, {v(AC,4)}'); a(f'ds_write_b128 v{A0}, {v(AC+4,4)} offset:256')
        a('s_mov_b64 exec, -1')
        self.drain_lg()
    def helper(self):
        a = self.a; self.who = 'h'; self.sm_out = 0; self.ilv = 0; self.tq_items = []; self.tq_pos = 0
        hb = lambda n: self.barrier(n, drain=False)
        a.label('L_helper')
        a.vmq, a.lgq, a.hist = list(self.hsnap[0]), list(self.hsnap[1]), list(self.hsnap[2]); a.alts = []
        Lz = self.lab('nozero')
        a(f's_cmp_ge_u32 s2, 8'); snap = a.cond_skip(f's_cbranch_scc1 {Lz}')
        a(f's_cmp_lg_u32 s{sWAVE}, 0'); a(f's_cbranch_scc1 {Lz}')
        a(f's_mul_i32 s{sT0}, s2, {XSTRIDE:#x}')
        a(f's_add_u32 s{S_RM}, s{KA+18}, s{sT0}'); a(f's_addc_u32 s{S_RM+1}, s{KA+19}, 0'); a(f's_and_b32 s{S_RM+1}, s{S_RM+1}, 0xffff')
        a(f'v_lshlrev_b32 v3, 2, v{vLANE}')
        a(f'buffer_store_dword v{vZERO}, v3, {srd(S_RM)}, 0 offen sc1')
        a(f'buffer_store_dword v{vZERO}, v3, {srd(S_RM)}, 0 offen offset:256 sc1')
        a(f'buffer_store_dword v{vZERO}, v3, {srd(S_RM)}, 0 offen offset:512 sc1')
        a(f'buffer_store_dword v{vZERO}, v3, {srd(S_RM)}, 0 offen offset:768 sc1')
        a(f'buffer_store_dword v{vZERO}, v3, {srd(S_RM)}, 0 offen offset:{HFLAG} sc1')
        a('s_waitcnt vmcnt(0)')
        a(f'v_mov_b32 v4, 1'); a(f's_lshl_b32 s{sT0}, s2, 2')
        a('s_mov_b64 exec, 1')
        a(f'buffer_store_dword v4, v{vZERO}, {srd(S_DBG)}, s{sT0} offen offset:32 sc1')
        a('s_mov_b64 exec, -1')
        a('s_waitcnt vmcnt(0)')
        a.cond_join(Lz, snap)
        a(f's_lshr_b32 s{sQ}, s2, 3'); a(f's_and_b32 s{sQ}, s{sQ}, 31')
        Lw = self.lab('warm1'); Lw2 = self.lab('warm2'); Lw3 = self.lab('warm3')
        if opt('tlb', 1):
            a(f's_lshl_b32 s{sT0}, s{sQ}, 2'); a(f's_add_u32 s{sT0}, s{sT0}, s{sWAVE}'); a(f's_and_b32 s{sT0}, s{sT0}, 15')
            a(f's_lshl_b32 s{sT1}, s{sT0}, 2'); a(f's_mov_b32 s4, 0x56421010'); a(f's_mov_b32 s5, 0x99997799')
            a(f's_lshr_b64 s[4:5], s[4:5], s{sT1}'); a(f's_and_b32 s{sT1}, s4, 15'); a(f's_lshl_b32 s{sT1}, s{sT1}, 3')
            a(f's_load_dwordx2 s[4:5], s[0:1], s{sT1}')
            a(f's_mul_i32 s{sT2}, s{sXCC}, {XSTRIDE:#x}'); a(f's_add_u32 s{sT2}, s{sT2}, 0x8000')
            a(f's_bitcmp1_b32 s{sT0}, 0'); a(f's_cselect_b32 s{sT3}, 0x200000, 0'); a(f's_add_u32 s{sT2}, s{sT2}, s{sT3}')
            a(f's_cmp_eq_u32 s{sT1}, 72'); a(f's_cselect_b32 s{sT2}, s{sT2}, 0')
            a('s_waitcnt lgkmcnt(0)')
            a(f's_add_u32 s4, s4, s{sT2}'); a(f's_addc_u32 s5, s5, 0')
            a(f's_load_dword s6, s[4:5], 128')
        a(f's_lshl_b32 s{sQ}, s{sQ}, 2'); a(f's_add_u32 s{sQ}, s{sQ}, s{sWAVE}')
        a(f's_lshl_b32 s{sT2}, s{sXCC}, 18'); a(f's_sub_u32 s{sT2}, s{sT2}, 16384'); a(f's_cmp_eq_u32 s{sXCC}, 0'); a(f's_cselect_b32 s{sT2}, 0, s{sT2}')
        a(f's_mul_i32 s{sTMPA}, s{sQ}, {17*128}'); a(f's_add_u32 s{sTMPA}, s{sTMPA}, s{sT2}')
        a(f'v_min_u32 v3, 16, v{vLANE}'); a(f'v_lshlrev_b32 v3, 7, v3')
        a(f'buffer_load_dword v17, v3, {srd(S_MISC)}, s{sTMPA} offen', tag='T')
        for nm in opt('vt_start', 'wqa+wqb').split('+'):
            if nm and nm != 'none': self.vtouch(nm)
        a.vmq = [({('v', 17)}, 'T')]*8
        self.st_key = None
        l = vLANE; t0, t1, t2 = 20, 21, 22
        a(f'v_lshrrev_b32 v{t0}, 2, v{l}'); a(f'v_mul_u32_u24 v{t0}, 3072, v{t0}')
        a(f'v_bfe_u32 v{t1}, v{l}, 4, 1'); a(f'v_lshlrev_b32 v{t1}, 1, v{t1}'); a(f'v_and_b32 v{t2}, 3, v{l}'); a(f'v_xor_b32 v{t1}, v{t1}, v{t2}')
        a(f'v_lshlrev_b32 v{t1}, 4, v{t1}'); a(f'v_add_u32 v{hD1}, v{t0}, v{t1}')
        a(f'v_lshrrev_b32 v{t0}, 3, v{l}'); a(f'v_lshlrev_b32 v{t0}, 10, v{t0}')
        a(f'v_and_b32 v{t1}, 7, v{l}'); a(f'v_lshrrev_b32 v{t2}, 4, v{l}'); a(f'v_lshlrev_b32 v{t2}, 1, v{t2}'); a(f'v_xor_b32 v{t1}, v{t1}, v{t2}')
        a(f'v_lshlrev_b32 v{t1}, 4, v{t1}'); a(f'v_add_u32 v{hD2}, v{t0}, v{t1}')
        a(f's_mov_b32 s{sT0}, 4682')
        for j in range(7):
            a(f'v_add_u32 v{t0}, {64*j}, v{l}')
            a(f'v_mul_u32_u24 v{t1}, s{sT0}, v{t0}'); a(f'v_lshrrev_b32 v{t1}, 16, v{t1}')
            a(f'v_mul_u32_u24 v{t2}, 14, v{t1}'); a(f'v_sub_u32 v{t0}, v{t0}, v{t2}')
            a(f'v_mul_u32_u24 v{t1}, 3584, v{t1}'); a(f'v_lshlrev_b32 v{t0}, 4, v{t0}')
            a(f'v_add_u32 v{hD3+j}, v{t0}, v{t1}')
        a(f'v_lshrrev_b32 v{t0}, 4, v{l}'); a(f'v_lshlrev_b32 v{t0}, 2, v{t0}'); a(f'v_bfe_u32 v{t1}, v{l}, 2, 2'); a(f'v_add_u32 v{t0}, v{t0}, v{t1}')
        a(f'v_and_b32 v{t1}, 3, v{l}'); a(f'v_lshlrev_b32 v{t1}, 3, v{t1}')
        a(f'v_mul_u32_u24 v{t2}, 224, v{t0}'); a(f'v_add_u32 v16, v{t2}, v{t1}')
        a(f'v_lshlrev_b32 v{t2}, 6, v{t0}'); a(f'v_add_u32 v{t2}, v{t2}, v{t1}'); a(f'v_bfe_u32 v{t1}, v{l}, 4, 1'); a(f'v_lshlrev_b32 v{t1}, 5, v{t1}')
        a(f'v_add_u32 v15, v{t2}, v{t1}')
        a(f's_mov_b32 s{sONES}, 0x3f803f80')
        self.role()
        a(f's_lshl_b32 s{sQ}, s{sSLOT}, 2'); a(f's_add_u32 s{sQ}, s{sQ}, s{sWAVE}'); self.st_key = None
        a(f's_mul_i32 s{sB1S}, s{sWAVE}, {32*3072}'); a(f's_lshl_b32 s{sT0}, s{sC}, 6'); a(f's_add_u32 s{sB1S}, s{sB1S}, s{sT0}')
        a(f's_mul_i32 s{sB1M}, s{sWAVE}, 6144')
        a(f's_lshl_b32 s{sB2S}, s{sWAVE}, 13'); a(f's_lshl_b32 s{sT0}, s{sCB}, 7'); a(f's_add_u32 s{sB2S}, s{sB2S}, s{sT0}')
        a(f's_lshl_b32 s{sB2M}, s{sWAVE}, 10')
        a(f's_mul_i32 s{sB3S}, s{sWAVE}, {2*32*3584}'); a(f's_mul_i32 s{sT0}, s{sC}, 224'); a(f's_add_u32 s{sB3S}, s{sB3S}, s{sT0}')
        a(f's_mul_i32 s{sB3M}, s{sWAVE}, {2*7168}')
        a(f's_mul_i32 s{sB4S}, s{sWAVE}, {448*1024}'); a(f's_lshl_b32 s{sT0}, s{sCB}, 7'); a(f's_add_u32 s{sB4S}, s{sB4S}, s{sT0}')
        a(f's_mul_i32 s{sB4L}, s{sWAVE}, {B4LS}'); a(f's_mul_i32 s{sB4H}, s{sWAVE}, {B4HS}'); a(f's_add_u32 s{sB4H}, s{sB4H}, {B4HI}')
        if opt('twait0', 1): a('s_waitcnt vmcnt(0)')
        self.stamp('h_T0')
        order = opt('hord', 1)
        a(f'v_add_u32 v3, s{sB1M}, v{vL16}'); a(f'v_add_u32 v4, s{sB3M}, v{vL16}'); a(f'v_add_u32 v5, {8*7168}, v4'); a(f'v_add_u32 v18, {49152}, v3')
        if order == 1:
            self.b1_load(0)
            self.h_phase0_load()
            self.b1_load(1)
            self.b1_write(0); self.drain_lg()
            self.stamp('h_c0')
            hb('bB1_0')
            self.b1_load(2)
            self.h_phase0()
            self.b1_write(1); self.drain_lg()
            hb('bB1_1')
            self.b1_load(3)
            self.h_phase0_store()
            self.b1_write(2); self.drain_lg()
            hb('bB1_2')
            self.h_bias()
            self.h_phase0_flag()
            self.stamp('h_F0')
            self.b1_write(3)
            self.h_bias_write(); self.drain_lg()
            hb('bB1_3')
        else:
            self.h_phase0_load()
            self.b1_load(0)
            self.h_phase0()
            self.b1_write(0); self.drain_lg()
            self.stamp('h_c0')
            hb('bB1_0')
            self.b1_load(1); self.b1_load(2)
            self.h_phase0_store()
            self.b1_write(1); self.drain_lg()
            hb('bB1_1')
            self.b1_load(3)
            self.b1_write(2); self.drain_lg()
            self.h_phase0_flag()
            self.stamp('h_F0')
            hb('bB1_2')
            self.h_bias()
            self.b1_write(3)
            self.h_bias_write(); self.drain_lg()
            hb('bB1_3')
        self.stamp('h_B1')
        for it in range(2):
            a.comment(f'---- helper iteration {it} ----')
            if it == 1: a(f's_mov_b32 s{sIT}, {DELTA:#x}')
            B = (lambda n: hb(n)) if it == 0 else (lambda n: a('s_barrier'))
            def VT(key, dflt=''):
                for nm in opt(f'{key}{it}', dflt).split('+'):
                    if nm and nm != 'none': self.vtouch(nm)
            stage = (it == 1) and opt('stage', 1)
            B('bX1')
            if it == 0:
                self.tstream([x for x in opt('sst', 'ar').split('+') if x != 'none'])
                VT('v_bX1_', 'oa+xb+w1a')
                self.h_colsum_qkv()
                B('b2'); B('b2b')
                self.h_halo()
                B('b3')
                self.tq(opt('s3', 40))
                a.wait_vm(0)
                self.dma_B2(0, 16)
                self.tq(opt('s4', 10))
                a.wait_vm_tag('B2')
            else:
                VT('v_bX1_', '')
                self.dma_B2(0, 15)
                if stage: self.b4_stage_load(2)
                B('b2'); B('b2b')
                self.h_halo()
                B('b3')
                self.dma_B2(15, 16)
                self.b3_write(0); self.drain_lg()
                if stage: self.b4_stage_load(3); self.b4_stage_load(4)
                a.wait_vm_tag('B2')
            self.stamp('h_B2')
            B('b4')
            B('bX2')
            if it == 0:
                self.b3_load(0)
                VT('v_bX2_', 'w1b')
                self.tq(opt('s5', 10))
                B('b5')
                self.tq(opt('s6', 45))
                a.wait_vm_tag('B30')
                self.b3_write(0)
                a.wait_vm(0)
                self.b3_load(1)
                a.wait_vm_tag('B31')
            else:
                if stage:
                    for n in (5, 9, 10): self.b4_stage_load(n)
                B('b5')
            self.b3_write(1)
            self.drain_lg()
            self.stamp('h_B3')
            B('b6')
            if it == 0:
                self.h_colsum_w1()
                self.tq(opt('s7', 20))
            B('bX3')
            if it == 0:
                VT('v_bX3_', 'w2a+w2b')
                self.tq(opt('s8', 20))
                B('b7')
                self.tq(1000)
                a.wait_vm(0)
                self.stamp('h_T3')
                self.dma_B4(0); self.dma_B4(1)
                for n in range(2, 9): self.dma_B4(n)
                a.wait_vm(0)
            else:
                self.dma_B4(0); self.dma_B4(1)
                if stage:
                    for n in (11, 12, 13): self.b4_stage_load(n)
                B('b7')
                if stage:
                    for n in range(6, 9): self.dma_B4(n)
                    for n in range(2, 6): self.b4_stage_write(n)
                    self.drain_lg()
                    a.wait_vm_tag('B4_8')
                else:
                    for n in range(2, 9): self.dma_B4(n)
                    a.wait_vm(0)
            self.stamp('h_B4')
            B('bB4')
            B('A1')
            if stage:
                self.b4_stage_write(9); self.b4_stage_write(10)
            else:
                self.dma_B4(9); self.dma_B4(10)
            B('A2')
            if stage:
                for n in (11, 12, 13): self.b4_stage_write(n)
                self.drain_lg()
                B('B1p'); B('B2p')
            else:
                self.dma_B4(11); self.dma_B4(12); self.dma_B4(13)
                a.wait_vm_tag('B4_10')
                B('B1p')
                a.wait_vm(0)
                B('B2p')
            if it == 0: VT('v_B2p_', 'wo')
            B('b9'); B('b10')
            if it == 0:
                a(f'v_add_u32 v18, {49152}, v3')
                for c in range(4): self.b1_write(c)
                self.drain_lg()
                self.stamp('h_B1b')
                a('s_barrier')
        a.wait_all(force=True)
        a('s_endpgm')
    def build(self):
        a = self.a
        self.prologue()
        self.lane_consts()
        self.p1_main(0)
        a('s_branch L_p1epi')
        a.label('L_iter')
        n0 = len(self.bars['c']); nts = self.nts; names = list(self.names)
        self.nts = names.index('p1_ready') if self.ts else 0
        self.p1_main(1)
        assert self.bars['c'][n0:] == ['bB1_0', 'bX1'], self.bars['c'][n0:]
        del self.bars['c'][n0:]
        if self.ts: self.nts = nts; self.names = names
        a.label('L_p1epi'); a.forget()
        self.p1_epi(); self.p2(); self.p3(); self.p4()
        a.wait_all(force=True)
        a('s_endpgm')
        self.helper()
        a.label('L_end')
        a('s_endpgm')
        cb = self.bars['c']; hb = self.bars['h']
        assert cb == hb, (cb, hb)
        body = a.text()
        hdr = open(os.path.join(os.path.dirname(os.path.abspath(__file__)), 'header.txt')).read()
        return hdr + f"""; @launch grid=(256,1,1) block=(512,1,1) lds={LDS_BYTES}
.amdgcn_target "amdgcn-amd-amdhsa--gfx950"
.text
.globl {KNAME}
.p2align 8
.type {KNAME},@function
{KNAME}:
{body}.section .rodata,"a"
.p2align 6
.amdhsa_kernel {KNAME}
  .amdhsa_next_free_vgpr 256
  .amdhsa_next_free_sgpr 102
  .amdhsa_accum_offset 256
  .amdhsa_group_segment_fixed_size 0
  .amdhsa_kernarg_size 80
  .amdhsa_user_sgpr_count 2
  .amdhsa_user_sgpr_kernarg_segment_ptr 1
  .amdhsa_system_sgpr_workgroup_id_x 1
.end_amdhsa_kernel
"""

if __name__ == '__main__':
    import argparse
    ap = argparse.ArgumentParser()
    ap.add_argument('-o', default='cdna_kernels/' + NAME + '.s')
    ap.add_argument('--ts', action='store_true')
    args = ap.parse_args()
    g = Gen(ts=args.ts)
    txt = g.build()
    open(args.o, 'w').write(txt)
    print(f'wrote {args.o}: {g.a.n_ins} instructions, {g.a.n_nops} nops, {g.a.n_waits} waits, max vm queue {g.a.maxvm}, max lgkm queue {g.a.maxlg}, {len(txt)} bytes', file=sys.stderr)
    if args.ts:
        print('stamps:', ','.join(g.names), file=sys.stderr); print('hstamps:', ','.join(g.hnames), file=sys.stderr)
        open('stamps.txt', 'w').write(','.join(g.names) + '\n' + ','.join(g.hnames) + '\n')
```
